```python
import torch

def _softmax(x, axis=-1):
    return torch.softmax(x, dim=axis)

def _gelu(x):
    return torch.nn.functional.gelu(x, approximate='tanh')

def _silu(x):
    return torch.nn.functional.silu(x)

def _sigmoid(x):
    return torch.sigmoid(x)

def _layernorm(x, axis=-1, eps=1e-05):
    m = x.mean(dim=axis, keepdim=True)
    v = x.var(dim=axis, keepdim=True, unbiased=False)
    return (x - m) / torch.sqrt(v + eps)

def _scatter_add(tgt, idx, src, axis=0):
    return tgt.clone().index_add_(axis, idx, src)

def _segment_sum(src, seg, n):
    out = torch.zeros((n,) + src.shape[1:], dtype=src.dtype)
    return out.index_add_(0, seg, src)

def _pad(x, pw):
    flat = tuple((v for pair in reversed(pw) for v in pair))
    return torch.nn.functional.pad(x, flat)
kernel_name = 'concat_heads__ssm_conv_s4__memory_aug_recurrent_mem_tr__prompt'

def setup_inputs():

    _w = lambda a: (lambda t: t.to(torch.bfloat16) if t.is_floating_point() else t)(torch.as_tensor(a))

    def _A_setup():
        B, L, D, N = (1, 2048, 640, 128)
        A_re = -(lambda _x: torch.exp(torch.as_tensor(_x)))((lambda *s: torch.randn(*s, dtype=torch.bfloat16) * 6.4)(D, N))
        A_im = torch.pi * (lambda *s: torch.randn(*s, dtype=torch.bfloat16) * 0.05)(D, N)
        B_re = (lambda *s: torch.randn(*s, dtype=torch.bfloat16) * 0.1)(D, N)
        B_im = (lambda *s: torch.randn(*s, dtype=torch.bfloat16) * 0.1)(D, N)
        C_re = (lambda *s: torch.randn(*s, dtype=torch.bfloat16) * 0.1)(D, N)
        C_im = (lambda *s: torch.randn(*s, dtype=torch.bfloat16) * 0.1)(D, N)
        log_dt = (lambda *s: torch.randn(*s, dtype=torch.bfloat16) * 0.05)(D) * 0.5 - 4.0
        Dskip = (lambda *s: torch.randn(*s, dtype=torch.bfloat16) * 0.05)(D)
        return {'u': _w((lambda *s: torch.randn(*s, dtype=torch.bfloat16) * 0.05)(B, L, D)), 'A_re': _w(A_re), 'A_im': _w(A_im), 'B_re': _w(B_re), 'B_im': _w(B_im), 'C_re': _w(C_re), 'C_im': _w(C_im), 'log_dt': _w(log_dt), 'Dskip': _w(Dskip)}
    _A_in = _A_setup()

    def _B_setup():
        B, S, Dm = (1, 2048, 640)
        H, Dh = (32, 128)
        M, seg = (8, 32)
        seg = min(seg, S)
        S = S // seg * seg
        return {'x': _w((lambda *s: torch.randn(*s, dtype=torch.bfloat16) * 0.05)(B, S, Dm)), 'mem0': _w((lambda *s: torch.randn(*s, dtype=torch.bfloat16) * 0.4)(B, M, Dm)), 'Wq': _w((lambda *s: torch.randn(*s, dtype=torch.bfloat16) * 6.4)(Dm, H, Dh) * Dm ** (-0.5)), 'Wk': _w((lambda *s: torch.randn(*s, dtype=torch.bfloat16) * 6.4)(Dm, H, Dh) * Dm ** (-0.5)), 'Wv': _w((lambda *s: torch.randn(*s, dtype=torch.bfloat16) * 0.4)(Dm, H, Dh) * Dm ** (-0.5)), 'Wo': _w((lambda *s: torch.randn(*s, dtype=torch.bfloat16) * 0.4)(H, Dh, Dm) * (H * Dh) ** (-0.5)), 'seg_len': seg}
    _B_in = _B_setup()
    return {'A_u': _A_in['u'], 'A_A_re': _A_in['A_re'], 'A_A_im': _A_in['A_im'], 'A_B_re': _A_in['B_re'], 'A_B_im': _A_in['B_im'], 'A_C_re': _A_in['C_re'], 'A_C_im': _A_in['C_im'], 'A_log_dt': _A_in['log_dt'], 'A_Dskip': _A_in['Dskip'], 'B_x': _B_in['x'], 'B_mem0': _B_in['mem0'], 'B_Wq': _B_in['Wq'], 'B_Wk': _B_in['Wk'], 'B_Wv': _B_in['Wv'], 'B_Wo': _B_in['Wo'], 'B_seg_len': _B_in['seg_len']}

def reference(A_u, A_A_re, A_A_im, A_B_re, A_B_im, A_C_re, A_C_im, A_log_dt, A_Dskip, B_x, B_mem0, B_Wq, B_Wk, B_Wv, B_Wo, B_seg_len):

    def _A_ref(u, A_re, A_im, B_re, B_im, C_re, C_im, log_dt, Dskip):
        Bsz, L, D = u.shape
        dt = torch.exp(log_dt)[:, None]
        A = A_re + 1j * A_im
        Bc = B_re + 1j * B_im
        Cc = C_re + 1j * C_im
        logdA = dt * A
        dB = dt * Bc
        l = (lambda x, dt: x.to(dt))(torch.arange(L), A_re.dtype)
        P = torch.exp(logdA[:, :, None] * l[None, None, :])
        K = torch.einsum('dn,dnl,dn->dl', Cc, P, dB).real
        L2 = 2 * L
        Kp = _pad(K, ((0, 0), (0, L)))
        up = (lambda x, *d: x.permute(*d))(u, 0, 2, 1)
        up = _pad(up, ((0, 0), (0, 0), (0, L)))
        Kf = (lambda x, axes=(-2, -1): torch.fft.rfft2(x.float(), dim=axes))(Kp[:, None, :], axes=(-2, -1))
        Uf = (lambda x, axes=(-2, -1): torch.fft.rfft2(x.float(), dim=axes))(up[:, :, None, :], axes=(-2, -1))
        Yf = Uf * Kf[None, :, :, :]
        y = (lambda x, s, axes=(-2, -1): torch.fft.irfft2(x, s=s, dim=axes).to(torch.bfloat16))(Yf, (1, L2), axes=(-2, -1))[:, :, 0, :L]
        y = (lambda x, *d: x.permute(*d))(y, 0, 2, 1) + u * Dskip[None, None, :]
        return y

    def _B_ref(x, mem0, Wq, Wk, Wv, Wo, seg_len):
        B, S, Dm = x.shape
        H, Dh = (Wq.shape[1], Wq.shape[2])
        M = mem0.shape[1]
        scale = Dh ** (-0.5)
        n_seg = S // seg_len
        L = M + seg_len
        idx = torch.arange(L)
        mask = (idx[:, None] < M) | (idx[:, None] >= idx[None, :])
        mem = mem0
        outs = []
        for s in range(n_seg):
            xs = x[:, s * seg_len:(s + 1) * seg_len, :].clone()
            h = torch.concatenate([mem, xs], axis=1)
            q = torch.einsum('btd,dhe->bhte', h, Wq)
            k = torch.einsum('btd,dhe->bhte', h, Wk)
            v = torch.einsum('btd,dhe->bhte', h, Wv)
            scores = torch.einsum('bhqe,bhke->bhqk', q, k) * scale
            scores = torch.where(mask[None, None], scores, -1000000000.0)
            p = _softmax(scores, axis=-1)
            o = torch.einsum('bhqk,bhke->bhqe', p, v)
            o = torch.einsum('bhte,hed->btd', o, Wo)
            mem = o[:, :M, :].clone()
            outs.append(o[:, M:, :])
        return torch.concatenate(outs, axis=1)
    a = _A_ref(A_u, A_A_re, A_A_im, A_B_re, A_B_im, A_C_re, A_C_im, A_log_dt, A_Dskip)
    b = _B_ref(B_x, B_mem0, B_Wq, B_Wk, B_Wv, B_Wo, B_seg_len)
    return torch.concatenate([a, b], axis=-1)
```

```python
from common import *
import struct

def mfma32(A, d, x, y, c):
    A(f'v_mfma_f32_16x16x32_bf16 {d}, {x}, {y}, {c}')
def mfma16(A, d, x, y, c):
    A(f'v_mfma_f32_16x16x16_bf16 {d}, {x}, {y}, {c}')

S_WS = 4
S_WAVE, S_SEG, S_H, S_B, S_C, S_T = 8, 9, 10, 11, 12, 13
M_L32 = 14
V_L16 = 2
V_HVO = 3
V_ST = 4
V_HFO = 5
V_Q, V_K, V_V, V_HF, V_HV = 16, 48, 80, 112, 128
V_SEL = 144
V_ONE = 152
V_CM = 156
V_DM = 160
V_T = 164
V_PX = 176
V_PM = 184
V_DEN = 188
V_CFX = 196
V_CFM = 228
V_O = 48
V_TMP = 244

def attn_task(A):
    ws = f's[{S_WS}:{S_WS+3}]'
    A(f'''s_lshl_b32 s{S_B}, s{S_H}, 6
    s_add_u32 s{S_B}, s{S_B}, s{S_SEG}
    s_lshl_b32 s{S_B}, s{S_B}, 13
    s_add_u32 s16, s{S_B}, {QX_OFF}
    s_add_u32 s17, s16, 4096
    s_add_u32 s18, s{S_B}, {KX_OFF}
    s_add_u32 s19, s18, 4096
    s_add_u32 s20, s{S_B}, {VX_OFF}
    s_add_u32 s21, s20, 4096
    s_lshl_b32 s22, s{S_SEG}, 5
    s_add_u32 s22, s22, s{S_H}            ; seg*32+h
    s_lshl_b32 s23, s22, 12
    s_add_u32 s23, s23, {HF_OFF}
    s_lshl_b32 s24, s22, 11
    s_add_u32 s24, s24, {HV_OFF}
    s_add_u32 s25, s{S_B}, {OX_OFF}''')
    for kt in range(2):
        for ks in range(4):
            A(f'buffer_load_dwordx4 {v(V_Q+(kt*4+ks)*4,4)}, v{V_L16}, {ws}, s{16+kt} offen offset:{ks*1024}')
    for ks in range(4):
        A(f'buffer_load_dwordx4 {v(V_HF+ks*4,4)}, v{V_HFO}, {ws}, s23 offen offset:{ks*1024}')
    for kt in range(2):
        for ks in range(4):
            A(f'buffer_load_dwordx4 {v(V_K+(kt*4+ks)*4,4)}, v{V_L16}, {ws}, s{18+kt} offen offset:{ks*1024}')
    for kt in range(2):
        for ks in range(4):
            A(f'buffer_load_dwordx4 {v(V_V+(kt*4+ks)*4,4)}, v{V_L16}, {ws}, s{20+kt} offen offset:{ks*1024}')
    for ks in range(4):
        A(f'buffer_load_dwordx4 {v(V_HV+ks*4,4)}, v{V_HVO}, {ws}, s24 offen offset:{ks*512}')
    A('s_waitcnt vmcnt(12)')
    for qt in range(2):
        Tm, T0, T1 = V_T, V_T + 4, V_T + 8
        for ks in range(4):
            q = v(V_Q + (qt * 4 + ks) * 4, 4)
            mfma32(A, v(Tm, 4), v(V_HF + ks * 4, 4), q, v(V_CM, 4) if ks == 0 else v(Tm, 4))
            mfma32(A, v(T0, 4), v(V_K + ks * 4, 4), q, (v(V_DM, 4) if qt == 0 else '0') if ks == 0 else v(T0, 4))
            if qt == 1:
                mfma32(A, v(T1, 4), v(V_K + (4 + ks) * 4, 4), q, v(V_DM, 4) if ks == 0 else v(T1, 4))
        A.nop(8)
        regs = list(range(Tm, Tm + 8)) + (list(range(T1, T1 + 4)) if qt == 1 else [])
        t = V_TMP
        A(f'v_max3_f32 v{t}, v{regs[0]}, v{regs[1]}, v{regs[2]}')
        rest = regs[3:]
        while rest:
            if len(rest) >= 2:
                A(f'v_max3_f32 v{t}, v{t}, v{rest[0]}, v{rest[1]}'); rest = rest[2:]
            else:
                A(f'v_max_f32 v{t}, v{t}, v{rest[0]}'); rest = rest[1:]
        A(f'''v_mov_b32 v{t+1}, v{t}
        s_nop 1
        v_permlane16_swap_b32 v{t}, v{t+1}
        v_max_f32 v{t}, v{t}, v{t+1}
        v_mov_b32 v{t+1}, v{t}
        s_nop 1
        v_permlane32_swap_b32 v{t}, v{t+1}
        v_max_f32 v{t}, v{t}, v{t+1}
        v_mul_f32 v{t}, s{S_C}, v{t}''')
        for r in regs:
            A(f'v_fma_f32 v{r}, v{r}, s{S_C}, -v{t}')
        for r in regs:
            A(f'v_exp_f32 v{r}, v{r}')
        A('s_nop 0')
        px = V_PX + qt * 4; pm = V_PM + qt * 2
        A(f'v_cvt_pk_bf16_f32 v{px}, v{T0}, v{T0+1}')
        A(f'v_cvt_pk_bf16_f32 v{px+1}, v{T0+2}, v{T0+3}')
        if qt == 1:
            A(f'v_cvt_pk_bf16_f32 v{px+2}, v{T1}, v{T1+1}')
            A(f'v_cvt_pk_bf16_f32 v{px+3}, v{T1+2}, v{T1+3}')
        else:
            A(f'v_mov_b32 v{px+2}, 0')
            A(f'v_mov_b32 v{px+3}, 0')
        A(f'v_cvt_pk_bf16_f32 v{pm}, v{Tm}, v{Tm+1}')
        A(f'v_cvt_pk_bf16_f32 v{pm+1}, v{Tm+2}, v{Tm+3}')
        A.nop(2)
        mfma32(A, v(V_DEN + qt * 4, 4), v(V_ONE, 4), v(px, 4), '0')
    A.nop(8)
    for qt in range(2):
        mfma16(A, v(V_DEN + qt * 4, 4), v(V_ONE, 2), v(V_PM + qt * 2, 2), v(V_DEN + qt * 4, 4))
    A('s_waitcnt vmcnt(0)')
    TA = V_Q
    for et2 in range(0, 8, 2):
        for j in range(2):
            et = et2 + j; ks = et >> 1; half = et & 1
            base = TA + ((et2 // 2) % 2) * 24 + j * 12 if False else TA + (j * 12) + ((et2 // 2) % 2) * 0
            mfma32(A, v(TA + j * 12, 4), v(V_V + ks * 4, 4), v(V_SEL + half * 4, 4), '0')
            mfma32(A, v(TA + j * 12 + 4, 4), v(V_V + (4 + ks) * 4, 4), v(V_SEL + half * 4, 4), '0')
            mfma32(A, v(TA + j * 12 + 8, 4), v(V_HV + ks * 4, 4), v(V_SEL + half * 4, 4), '0')
        A.nop(8)
        for j in range(2):
            et = et2 + j; b = TA + j * 12
            A(f'v_cvt_pk_bf16_f32 v{V_CFX+et*4}, v{b}, v{b+1}')
            A(f'v_cvt_pk_bf16_f32 v{V_CFX+et*4+1}, v{b+2}, v{b+3}')
            A(f'v_cvt_pk_bf16_f32 v{V_CFX+et*4+2}, v{b+4}, v{b+5}')
            A(f'v_cvt_pk_bf16_f32 v{V_CFX+et*4+3}, v{b+6}, v{b+7}')
            A(f'v_cvt_pk_bf16_f32 v{V_CFM+et*2}, v{b+8}, v{b+9}')
            A(f'v_cvt_pk_bf16_f32 v{V_CFM+et*2+1}, v{b+10}, v{b+11}')
        A.nop(3)
    for qt in range(2):
        for et in range(8):
            mfma32(A, v(V_O + et * 4, 4), v(V_CFX + et * 4, 4), v(V_PX + qt * 4, 4), '0')
        for et in range(8):
            mfma16(A, v(V_O + et * 4, 4), v(V_CFM + et * 2, 2), v(V_PM + qt * 2, 2), v(V_O + et * 4, 4))
        A(f'v_rcp_f32 v{V_TMP}, v{V_DEN + qt*4}')
        A.nop(8)
        for et in range(8):
            b = V_O + et * 4
            for r in range(4):
                A(f'v_mul_f32 v{b+r}, v{V_TMP}, v{b+r}')
            A(f'v_cvt_pk_bf16_f32 v{V_TMP+2+(et%2)*2}, v{b}, v{b+1}')
            A(f'v_cvt_pk_bf16_f32 v{V_TMP+3+(et%2)*2}, v{b+2}, v{b+3}')
            off = (et >> 1) * 1024 + (et & 1) * 512
            so = 's25' if qt == 0 else 's26'
            A(f'buffer_store_dwordx2 v[{V_TMP+2+(et%2)*2}:{V_TMP+3+(et%2)*2}], v{V_ST}, {ws}, {so} offen offset:{off}')
        if qt == 0:
            A('s_add_u32 s26, s25, 4096')
            A.nop(4)

def attn_consts(A):
    A(f'''v_lshlrev_b32 v{V_L16}, 4, v1
    v_and_b32 v6, 15, v1
    v_lshrrev_b32 v7, 4, v1
    v_and_b32 v8, 7, v1
    v_lshlrev_b32 v9, 7, v7
    v_lshlrev_b32 v8, 4, v8
    v_add_u32 v{V_HVO}, v9, v8
    v_lshlrev_b32 v9, 8, v7
    v_add3_u32 v{V_HFO}, v9, v8, 64
    v_add_u32 v{V_HFO}, 64, v{V_HFO}
    v_lshrrev_b32 v9, 1, v7
    v_lshlrev_b32 v9, 8, v9
    v_lshlrev_b32 v10, 4, v6
    v_and_b32 v11, 1, v7
    v_lshlrev_b32 v11, 3, v11
    v_add3_u32 v{V_ST}, v9, v10, v11
    v_cmp_gt_u32 vcc, 32, v1
    s_mov_b64 s[{M_L32}:{M_L32+1}], vcc
    v_mov_b32 v9, 0xff800000
    v_mov_b32 v10, 0
    v_cndmask_b32 v{V_CM}, v10, v9, s[{M_L32}:{M_L32+1}]
    v_mov_b32 v{V_CM+1}, v{V_CM}
    v_mov_b32 v{V_CM+2}, v{V_CM}
    v_mov_b32 v{V_CM+3}, v{V_CM}
    v_lshlrev_b32 v11, 2, v7''')
    for r in range(4):
        A(f'''v_add_u32 v12, {r}, v11
        v_cmp_le_u32 vcc, v12, v6
        s_nop 1
        v_cndmask_b32 v{V_DM+r}, v9, v10, vcc''')
    for r in range(4):
        A(f'v_mov_b32 v{V_ONE+r}, 0x3f803f80')
    A(f'''v_and_b32 v9, 1, v6
    v_lshlrev_b32 v9, 4, v9
    v_mov_b32 v10, 0x3f80
    v_lshlrev_b32 v10, v9, v10
    v_and_b32 v9, 7, v6
    v_lshrrev_b32 v9, 1, v9
    v_lshrrev_b32 v11, 3, v6            ; e'>>3''')
    for half in range(2):
        A(f'''v_add_u32 v12, {2*half}, v11
        v_cmp_eq_u32 s[26:27], v12, v7''')
        for r in range(4):
            A(f'''v_cmp_eq_u32 vcc, {r}, v9
            s_and_b64 vcc, vcc, s[26:27]
            s_nop 1
            v_cndmask_b32 v{V_SEL+half*4+r}, 0, v10, vcc''')
    c = struct.unpack('<I', struct.pack('<f', 128 ** -0.5 * 1.4426950408889634))[0]
    A(f's_mov_b32 s{S_C}, {hex(c)}')

def gen_attn(cfg, name='attn_kernel'):
    P = 'AT'
    A = Asm(P)
    A(f'''s_cmp_ge_u32 s2, 512
    s_cbranch_scc1 {P}_end
    s_load_dwordx2 s[26:27], s[0:1], {KA['ws']}
    v_lshrrev_b32 v2, 6, v0
    v_and_b32 v1, 63, v0
    s_nop 0
    v_readfirstlane_b32 s{S_WAVE}, v2
    s_waitcnt lgkmcnt(0)''')
    srd(A, S_WS, 26, 27, WS_BYTES)
    attn_consts(A)
    A(f'''s_lshr_b32 s{S_SEG}, s2, 3
    s_and_b32 s{S_H}, s2, 7
    s_lshl_b32 s{S_H}, s{S_H}, 2
    s_add_u32 s{S_H}, s{S_H}, s{S_WAVE}''')
    attn_task(A)
    A(f'{P}_end:')
    A('s_endpgm')
    return kernel_text(name, A.text(), 256, 48, 256)

def gen_wof_body(A, kk_sreg, P):
    ws = f's[{S_WS}:{S_WS+3}]'
    A(f's_load_dwordx2 s[26:27], s[0:1], {KA["Wo"]}')
    A('s_waitcnt lgkmcnt(0)')
    srd(A, 16, 26, 27, 4096 * 1280)
    A(f'''s_mul_i32 s20, s{kk_sreg}, 40960
    v_lshlrev_b32 v2, 4, v0
    s_lshl_b32 s21, s{S_WAVE}, 10''')
    for r in range(10):
        A(f'''s_add_u32 m0, s21, {r*4096}
        s_add_u32 s22, s20, {r*4096}
        s_nop 0
        buffer_load_dwordx4 v2, s[16:19], s22 offen lds''')
    A('s_waitcnt vmcnt(0)')
    A('s_barrier')
    A(f'''v_and_b32 v3, 15, v1
    v_lshrrev_b32 v3, 2, v3
    v_lshrrev_b32 v4, 4, v1
    v_lshlrev_b32 v4, 3, v4
    v_add_u32 v3, v3, v4
    v_mul_u32_u24 v3, 1280, v3
    v_and_b32 v4, 3, v1
    v_lshlrev_b32 v4, 3, v4
    s_mul_i32 s21, s{S_WAVE}, 320
    v_add3_u32 v3, v3, v4, s21
    v_lshlrev_b32 v5, 4, v1
    s_mul_i32 s22, s{S_WAVE}, {10*128*1024}
    s_lshl_b32 s23, s{kk_sreg}, 10
    s_add_u32 s22, s22, s23
    s_add_u32 s22, s22, {WOF_OFF}''')
    for dt in range(10):
        A(f'ds_read_b64_tr_b16 v[{8+dt*4}:{9+dt*4}], v3 offset:{dt*32}')
        A(f'ds_read_b64_tr_b16 v[{10+dt*4}:{11+dt*4}], v3 offset:{dt*32 + 4*1280}')
    A('s_waitcnt lgkmcnt(0)')
    for dt in range(10):
        A(f'buffer_store_dwordx4 v[{8+dt*4}:{11+dt*4}], v5, {ws}, s22 offen')
        A(f's_add_u32 s22, s22, {128*1024}')
    A('s_barrier')

def gen_wof(cfg, name='wof_kernel'):
    P = 'WF'
    A = Asm(P)
    A(f'''s_cmp_ge_u32 s2, 128
    s_cbranch_scc1 {P}_end
    s_load_dwordx2 s[26:27], s[0:1], {KA['ws']}
    v_lshrrev_b32 v2, 6, v0
    v_and_b32 v1, 63, v0
    s_nop 0
    v_readfirstlane_b32 s{S_WAVE}, v2
    s_waitcnt lgkmcnt(0)''')
    srd(A, S_WS, 26, 27, WS_BYTES)
    A('s_mov_b32 s9, s2')
    gen_wof_body(A, 9, P)
    A(f'{P}_end:')
    A('s_endpgm')
    return kernel_text(name, A.text(), 64, 48, 64)

def gen_outp(cfg, name='outp_kernel'):
    P = 'OP'
    A = Asm(P)
    ws = f's[{S_WS}:{S_WS+3}]'
    V_A, V_B2, V_AC = 16, 56, 96
    A(f'''s_cmp_ge_u32 s2, 256
    s_cbranch_scc1 {P}_end
    s_load_dwordx2 s[26:27], s[0:1], {KA['ws']}
    s_load_dwordx2 s[28:29], s[0:1], {KA['out']}
    v_lshrrev_b32 v2, 6, v0
    v_and_b32 v1, 63, v0
    s_nop 0
    v_readfirstlane_b32 s{S_WAVE}, v2
    s_waitcnt lgkmcnt(0)''')
    srd(A, S_WS, 26, 27, WS_BYTES)
    srd(A, 20, 28, 29, 2048 * 2560)
    A(f'''s_lshr_b32 s9, s2, 3
    s_and_b32 s10, s2, 7
    v_lshlrev_b32 v2, 4, v1
    s_mul_i32 s11, s10, {5*128*1024}
    s_lshl_b32 s12, s{S_WAVE}, 15
    s_add_u32 s11, s11, s12
    s_add_u32 s11, s11, {WOF_OFF}
    s_lshl_b32 s12, s{S_WAVE}, 22          ; 8*wave*64*8192
    s_lshl_b32 s13, s9, 14                 ; 2tb*8192
    s_add_u32 s12, s12, s13
    s_add_u32 s12, s12, {OX_OFF}''')
    def loads(buf, kkl):
        for j in range(5):
            A(f's_add_u32 s14, s11, {j*128*1024 + kkl*1024}')
            A(f'buffer_load_dwordx4 {v(V_A + buf*20 + j*4, 4)}, v2, {ws}, s14 offen')
        for tt in range(4):
            A(f's_add_u32 s14, s12, {(kkl>>2)*64*8192 + (tt>>1)*8192 + (tt&1)*4096 + (kkl&3)*1024}')
            A(f'buffer_load_dwordx4 {v(V_B2 + buf*16 + tt*4, 4)}, v2, {ws}, s14 offen')
    loads(0, 0)
    for kkl in range(32):
        buf = kkl % 2
        if kkl + 1 < 32:
            loads(1 - buf, kkl + 1)
            A('s_waitcnt vmcnt(9)')
        else:
            A('s_waitcnt vmcnt(0)')
        for j in range(5):
            for tt in range(4):
                d = V_AC + (j * 4 + tt) * 4
                mfma32(A, v(d, 4), v(V_A + buf * 20 + j * 4, 4), v(V_B2 + buf * 16 + tt * 4, 4), '0' if kkl == 0 else v(d, 4))
    A.nop(8)
    A(f'''s_mul_i32 s14, s{S_WAVE}, 20480
    v_add_u32 v3, s14, v2''')
    for t in range(20):
        A(f'ds_write_b128 v3, {v(V_AC + t*4, 4)} offset:{t*1024}')
    A('s_waitcnt lgkmcnt(0)')
    A('s_barrier')
    A(f'''s_mul_i32 s14, s{S_WAVE}, 5120
    v_add_u32 v3, s14, v2
    v_add_u32 v4, 40960, v3''')
    for i in range(5):
        A(f'ds_read_b128 {v(16 + i*16, 4)}, v3 offset:{i*1024}')
        A(f'ds_read_b128 {v(20 + i*16, 4)}, v3 offset:{i*1024 + 20480}')
        A(f'ds_read_b128 {v(24 + i*16, 4)}, v4 offset:{i*1024}')
        A(f'ds_read_b128 {v(28 + i*16, 4)}, v4 offset:{i*1024 + 20480}')
        if i % 2 == 1: A('s_waitcnt lgkmcnt(0)')
    A('s_waitcnt lgkmcnt(0)')
    A(f'''v_and_b32 v5, 15, v1
    v_mul_u32_u24 v5, 2560, v5
    v_lshrrev_b32 v6, 4, v1
    v_lshlrev_b32 v6, 3, v6
    v_add_u32 v5, v5, v6
    s_mul_i32 s15, s9, {64*2560}
    s_mul_i32 s16, s10, 160
    s_add_u32 s15, s15, s16
    s_add_u32 s15, s15, 1280
    s_mul_i32 s17, s{S_WAVE}, 5''')
    for i in range(5):
        b = 16 + i * 16
        for r in range(4):
            A(f'v_add_f32 v{b+r}, v{b+r}, v{b+4+r}')
            A(f'v_add_f32 v{b+8+r}, v{b+8+r}, v{b+12+r}')
        for r in range(4):
            A(f'v_add_f32 v{b+r}, v{b+r}, v{b+8+r}')
        A(f'''v_cvt_pk_bf16_f32 v{b}, v{b}, v{b+1}
        v_cvt_pk_bf16_f32 v{b+1}, v{b+2}, v{b+3}
        s_add_u32 s18, s17, {i}
        s_lshr_b32 s19, s18, 2
        s_and_b32 s18, s18, 3
        s_mul_i32 s18, s18, {16*2560}
        s_lshl_b32 s19, s19, 5
        s_add_u32 s18, s18, s19
        s_add_u32 s18, s18, s15
        buffer_store_dwordx2 v[{b}:{b+1}], v5, s[20:23], s18 offen''')
    A(f'{P}_end:')
    A('s_endpgm')
    return kernel_text(name, A.text(), 176, 48, 176)
```

```python
from common import *

MEML = 0
RED = 10240
ROLE = 17408
STAGE = 20480
CHAIN_LDS = 143360
KXL = 20480
VXL = 20480 + 32768

V_E1LD, V_E1W, V_MEMR, V_FST, V_FVST, V_HF, V_HV, V_FLD, V_FVLD = 10, 11, 12, 13, 14, 15, 16, 17, 18
V_KX0, V_KX1, V_VX0, V_VX1, V_REDW, V_REDR, V_E3ST, V_E3L0, V_E3L1, V_E1ST = 19, 20, 21, 22, 23, 24, 25, 26, 27, 28
V_PF = 29
V_SENT = 30
V_ACC2 = 104
V_PFD = 108
V_L16 = 109
V_PFH = 121
V_PFV = 122
V_KLR = 120
V_CINIT = 32
V_ACC = 36
V_E1P = 40
V_E3P = 52
V_E3A = 60
V_MEMF = 64
V_VPXA = 64
V_VPMA = 88
V_VX = 144
V_F = 176
V_FV = 192
V_VPX = 208
V_VPM = 220
V_TM, V_T0, V_T1 = 226, 230, 234
V_PX, V_PM = 238, 242
V_D = 244
A_WA, A_WV, A_WO, A_KX, A_SEL, A_ONE = 0, 80, 160, 208, 240, 244
S_WS = 4
S_T = 8
S_XCC, S_TK, S_W, S_G, S_TT, S_STEP = 12, 13, 14, 16, 17, 18
S_E1C, S_E1C1, S_E1C2, S_E1N, S_E1CL, S_E2C, S_E2CL, S_E3C, S_E3CL, S_KXN, S_HFO, S_HVO = 20, 21, 22, 23, 24, 25, 26, 27, 28, 29, 38, 39
M_I8, M_L32, M_E1ST, M_RED = 30, 32, 34, 36
S_C = 40
S_TO = 41
S_PAR = 42
S_MODE = 43
S_SENT = 44
S_PFO = 45
S_HB = 46
S_D0, S_D1 = 47, 48
M_L4 = 50
TIMEOUT = 1 << 20

def mfma32(A, d, x, y, c):
    A(f'v_mfma_f32_16x16x32_bf16 {d}, {x}, {y}, {c}')
def mfma16(A, d, x, y, c):
    A(f'v_mfma_f32_16x16x16_bf16 {d}, {x}, {y}, {c}')

def check_regs(A, regs, tmp, lab_ok, lab_retry_fallthrough=None):
    regs = list(regs)
    cur = None
    if len(regs) >= 3:
        A(f'v_max3_u32 v{tmp}, v{regs[0]}, v{regs[1]}, v{regs[2]}'); rest = regs[3:]
    else:
        A(f'v_max_u32 v{tmp}, v{regs[0]}, v{regs[1]}'); rest = regs[2:]
    while rest:
        if len(rest) >= 2:
            A(f'v_max3_u32 v{tmp}, v{tmp}, v{rest[0]}, v{rest[1]}'); rest = rest[2:]
        else:
            A(f'v_max_u32 v{tmp}, v{tmp}, v{rest[0]}'); rest = rest[1:]
    A(f'v_cmp_eq_u32 vcc, -1, v{tmp}')
    A(f's_cbranch_vccz {lab_ok}')

def retry_tail(A, lab_top, abort, sleep=0, site=None):
    if site is not None:
        A(f's_add_u32 s{90+site}, s{90+site}, 1')
    if sleep:
        A(f's_sleep {sleep}')
    A(f'''s_add_u32 s{S_TO}, s{S_TO}, 1
    s_cmp_lt_u32 s{S_TO}, {TIMEOUT}
    s_cbranch_scc1 {lab_top}
    s_branch {abort}''')

def stamp(A, cfg, idx):
    if not cfg.get('stamps'):
        return
    l = A.lab('st')
    A(f'''s_cmp_lg_u32 s{S_STEP}, {cfg.get('tstep', 30)}
    s_cbranch_scc1 {l}
    s_memtime s[56:57]
    s_waitcnt lgkmcnt(0)
    s_mov_b32 s{74+idx}, s56
    {l}:''')

class Cap:
    def __init__(self): self.l=[]
    def __call__(self, t):
        for x in t.split('\n'):
            x=x.strip()
            if x: self.l.append(x)
    def nop(self,n):
        while n>0:
            k=min(n,16); self.l.append('s_nop %d'%(k-1)); n-=k

def weave(A, prim, sec, start=0, every=2):
    sec=list(sec); nxt=start
    for i,x in enumerate(prim):
        A(x)
        if sec and i>=nxt and not x.startswith('s_waitcnt') :
            A(sec.pop(0)); nxt=i+every
    for x in sec: A(x)

def vpx_compute(A):
    for kt in range(2):
        for tau in range(3):
            d = V_VPXA + (kt * 3 + tau) * 4
            for ks in range(4):
                c = '0' if ks == 0 else v(d, 4)
                mfma32(A, v(d, 4), v(V_VX + (kt * 4 + ks) * 4, 4), a(A_WO + (ks * 3 + tau) * 4, 4), c)
    A.nop(8)
    for tau in range(3):
        for kt in range(2):
            d = V_VPXA + (kt * 3 + tau) * 4
            A(f'v_cvt_pk_bf16_f32 v{V_VPX + tau*4 + kt*2}, v{d}, v{d+1}')
            A(f'v_cvt_pk_bf16_f32 v{V_VPX + tau*4 + kt*2 + 1}, v{d+2}, v{d+3}')

def load_kx(A, soff):
    for kt in range(2):
        for ks in range(4):
            A(f'buffer_load_dwordx4 {a(A_KX + (kt*4+ks)*4, 4)}, v{V_KX0+kt}, s[{S_WS}:{S_WS+3}], {soff} offen offset:{ks*1024}')
def load_vx(A, soff):
    for kt in range(2):
        for ks in range(4):
            A(f'buffer_load_dwordx4 {v(V_VX + (kt*4+ks)*4, 4)}, v{V_VX0+kt}, s[{S_WS}:{S_WS+3}], {soff} offen offset:{ks*1024}')

def dma_list(seg_k_sreg, seg_v_sreg):
    ws = f's[{S_WS}:{S_WS+3}]'
    out = []
    for reg, (sreg, goff, loff) in enumerate(((seg_k_sreg, KX_OFF, KXL), (seg_v_sreg, VX_OFF, VXL))):
        for hh in range(4):
            for half in range(2):
                grp = [f's_add_u32 s{S_D0}, s{S_HB}, s{sreg}',
                       f's_add_u32 s{S_D0}, s{S_D0}, {goff + (hh << 19) + half * 4096}',
                       f's_mov_b32 m0, {loff + hh * 8192 + half * 4096}',
                       's_nop 0']
                for q in range(4):
                    grp.append(f'buffer_load_dwordx4 v{V_L16}, {ws}, s{S_D0} offen offset:{q*1024} lds')
                out.append(grp)
    return out

def lds_kx(A):
    for i in range(8):
        A(f'ds_read_b128 {a(A_KX + i*4, 4)}, v{V_KLR} offset:{i*1024}')
def lds_vx(A):
    for i in range(8):
        A(f'ds_read_b128 {v(V_VX + i*4, 4)}, v{V_KLR} offset:{32768 + i*1024}')

def proj_tile(A, wbase):
    for ks in range(20):
        d = V_ACC if ks % 2 == 0 else V_ACC2
        c = '0' if ks < 2 else v(d, 4)
        mfma32(A, v(d, 4), a(wbase + ks * 4, 4), v(V_MEMF + (ks // 2) * 4, 4), c)

def proj_fin(A, r0, r1):
    for r in range(4):
        A(f'v_add_f32_dpp v{V_ACC+r}, v{V_ACC2+r}, v{V_ACC+r} row_ror:8 row_mask:0xf bank_mask:0xf')
    A(f'''v_cvt_pk_bf16_f32 v{r0}, v{V_ACC}, v{V_ACC+1}
    v_cvt_pk_bf16_f32 v{r1}, v{V_ACC+2}, v{V_ACC+3}
    v_min_u32 v{r0}, s{S_SENT}, v{r0}
    v_min_u32 v{r1}, s{S_SENT}, v{r1}''')

def max_chain(regs, tmp):
    regs = list(regs); out = []
    out.append(f'v_max3_u32 v{tmp}, v{regs[0]}, v{regs[1]}, v{regs[2]}'); rest = regs[3:]
    while rest:
        if len(rest) >= 2:
            out.append(f'v_max3_u32 v{tmp}, v{tmp}, v{rest[0]}, v{rest[1]}'); rest = rest[2:]
        else:
            out.append(f'v_max_u32 v{tmp}, v{tmp}, v{rest[0]}'); rest = rest[1:]
    return out

def gen_loop(A, cfg, fast, P):
    st = '' if fast else 'sc1'
    ws = f's[{S_WS}:{S_WS+3}]'
    abort = P + '_abort'
    top = A.lab('top')
    def vx_loads(soff):
        c = Cap(); load_vx(c, soff); return c.l
    def kx_loads(soff):
        c = Cap(); load_kx(c, soff); return c.l
    vxl = vx_loads(f's{S_KXN}')
    kxl = kx_loads(f's{S_KXN}')
    f_loads = [f'buffer_load_dwordx4 {v(V_F+ks*4,4)}, v{V_FLD}, {ws}, s{S_E2C} offen offset:{ks*1024} sc1' for ks in range(4)]
    fv_loads = [f'buffer_load_dwordx4 {v(V_FV+ks*4,4)}, v{V_FVLD}, {ws}, s{S_E2C} offen offset:{ks*512} sc1' for ks in range(4)]
    e3_loads = [f'buffer_load_dwordx4 {v(V_E3P,4)}, v{V_E3L0}, {ws}, s{S_E3C} offen sc1',
                f'buffer_load_dwordx4 {v(V_E3P+4,4)}, v{V_E3L1}, {ws}, s{S_E3C} offen sc1']
    A(f'{top}:')
    A(f'''s_and_b32 s15, s{S_STEP}, 3
    s_lshl_b32 s{S_E1C}, s15, 14
    s_add_u32 s{S_E1C1}, s{S_E1C}, 4096
    s_add_u32 s{S_E1C2}, s{S_E1C}, 8192
    s_lshl_b32 s{S_E2C}, s15, 15
    s_mul_i32 s{S_E3C}, s15, {E3_S}
    s_add_u32 s15, s{S_STEP}, 1
    s_lshl_b32 s{S_KXN}, s15, 13
    s_and_b32 s15, s15, 3
    s_lshl_b32 s{S_E1N}, s15, 14
    s_add_u32 s15, s{S_STEP}, 2
    s_lshl_b32 s{S_PFO}, s15, 13
    s_and_b32 s15, s15, 3
    s_lshl_b32 s{S_E2CL}, s15, 15
    s_mul_i32 s{S_E3CL}, s15, {E3_S}
    s_add_u32 s15, s{S_STEP}, 3
    s_and_b32 s15, s15, 3
    s_lshl_b32 s{S_E1CL}, s15, 14
    s_lshl_b32 s{S_HFO}, s{S_STEP}, 17
    s_lshl_b32 s{S_HVO}, s{S_STEP}, 16''')
    A(vxl[0]); A(vxl[1])
    l_stage = A.lab('stage')
    A(f's_cmp_eq_u32 s{S_STEP}, 0')
    A(f's_cbranch_scc1 {l_stage}')
    l_p = A.lab('e1poll'); l_ok = A.lab('e1ok'); l_two = A.lab('e1two')
    A(f's_mov_b32 s{S_TO}, 0')
    if cfg.get('e1_sleep'):
        A(f's_sleep {cfg["e1_sleep"]}')
    A(f'{l_p}:')
    A(f'buffer_load_dwordx4 {v(V_E1P,4)}, v{V_E1LD}, {ws}, s{S_E1C} offen sc1')
    A(f'buffer_load_dwordx4 {v(V_E1P+4,4)}, v{V_E1LD}, {ws}, s{S_E1C1} offen sc1')
    A(f's_cmp_ge_u32 s{S_W}, 2')
    A(f's_cbranch_scc1 {l_two}')
    A(f'buffer_load_dwordx4 {v(V_E1P+8,4)}, v{V_E1LD}, {ws}, s{S_E1C2} offen sc1')
    A(f'{l_two}:')
    A('s_waitcnt vmcnt(0)')
    check_regs(A, range(V_E1P, V_E1P + 12), 2, l_ok)
    retry_tail(A, l_p, abort, cfg.get('e1_retry_sleep', 0), 0 if (cfg.get('stamps') or cfg.get('tot')) else None)
    A(f'{l_ok}:')
    A(f'{l_stage}:')
    stamp(A, cfg, 0)
    A(f'ds_write_b128 v{V_E1W}, {v(V_E1P,4)}')
    A(f'ds_write_b128 v{V_E1W}, {v(V_E1P+4,4)} offset:4096')
    l_n3 = A.lab('n3')
    A(f's_cmp_ge_u32 s{S_W}, 2')
    A(f's_cbranch_scc1 {l_n3}')
    A(f'ds_write_b128 v{V_E1W}, {v(V_E1P+8,4)} offset:8192')
    A(f'{l_n3}:')
    A('s_waitcnt lgkmcnt(0)')
    A('s_barrier')
    stamp(A, cfg, 1)
    for p in range(10):
        A(f'ds_read_b128 {v(V_MEMF+p*4,4)}, v{V_MEMR} offset:{p*1024}')
    A(vxl[2])
    for ks in range(20):
        if ks % 2 == 0:
            A(f's_waitcnt lgkmcnt({9 - ks // 2})')
        d = V_ACC if ks % 2 == 0 else V_ACC2
        c = '0' if ks < 2 else v(d, 4)
        mfma32(A, v(d, 4), a(A_WA + ks * 4, 4), v(V_MEMF + (ks // 2) * 4, 4), c)
        if ks == 5: A(vxl[3])
        if ks == 12: A(vxl[4])
    A.nop(8)
    stamp(A, cfg, 2)
    proj_fin(A, 2, 3)
    A(f'''s_mov_b64 exec, s[{M_I8}:{M_I8+1}]
    buffer_store_dwordx2 v[2:3], v{V_FST}, {ws}, s{S_E2C} offen {st}
    buffer_store_dwordx2 v[{V_SENT}:{V_SENT+1}], v{V_FST}, {ws}, s{S_E2CL} offen {st}''')
    l_w01 = A.lab('w01'); l_j = A.lab('j')
    l_done = P + '_done'
    A(f's_cmp_lt_u32 s{S_W}, 2')
    A(f's_cbranch_scc1 {l_w01}')
    A(f'buffer_store_dwordx2 v[2:3], v{V_HF}, {ws}, s{S_HFO} offen')
    A('s_mov_b64 exec, -1')
    c = Cap(); proj_tile(c, A_WV)
    fpos = cfg.get('f_in_v', 13)
    for i, x in enumerate(c.l):
        A(x)
        if i in (1, 5, 9): A(vxl[5 + (i - 1) // 4])
        if i >= fpos and i - fpos < 4: A(f_loads[i - fpos])
    for q in range(max(0, 20 - fpos), 4): A(f_loads[q])
    A.nop(8)
    proj_fin(A, 4, 5)
    A(f'''s_mov_b64 exec, s[{M_I8}:{M_I8+1}]
    buffer_store_dwordx2 v[4:5], v{V_FVST}, {ws}, s{S_E2C} offen {st}
    buffer_store_dwordx2 v[{V_SENT}:{V_SENT+1}], v{V_FVST}, {ws}, s{S_E2CL} offen {st}
    buffer_store_dwordx2 v[4:5], v{V_HV}, {ws}, s{S_HVO} offen
    s_mov_b64 exec, -1''')
    stamp(A, cfg, 3)
    A(f's_cmp_ge_u32 s{S_STEP}, 63')
    A(f's_cbranch_scc1 {l_done}')
    A(f's_mov_b32 s{S_TO}, 0')
    l_sc = A.lab('scores'); l_sc2 = A.lab('scores2')
    def scores(extra):
        for ks in range(4):
            A(f's_waitcnt vmcnt({extra + 3 - ks})')
            f = v(V_F + ks * 4, 4)
            mfma32(A, v(V_TM, 4), f, f, v(V_CINIT, 4) if ks == 0 else v(V_TM, 4))
            mfma32(A, v(V_T0, 4), a(A_KX + ks * 4, 4), f, '0' if ks == 0 else v(V_T0, 4))
            mfma32(A, v(V_T1, 4), a(A_KX + (4 + ks) * 4, 4), f, '0' if ks == 0 else v(V_T1, 4))
    l_ok = A.lab('e2ok'); l_p = A.lab('e2poll')
    scores(3)
    check_regs(A, range(V_F, V_F + 16), 2, l_ok)
    A(f's_branch {l_p}')
    A(f'{l_w01}:')
    A('s_mov_b64 exec, -1')
    for x in vxl[5:8]: A(x)
    if cfg.get('e2_sleep'):
        A(f's_sleep {cfg["e2_sleep"]}')
    stamp(A, cfg, 3)
    A(f's_cmp_ge_u32 s{S_STEP}, 63')
    A(f's_cbranch_scc1 {l_done}')
    A(f's_mov_b32 s{S_TO}, 0')
    A(f'{l_p}:')
    if cfg.get('stamps') or cfg.get('tot'): A('s_add_u32 s91, s91, 1')
    for x in f_loads: A(x)
    scores(0)
    check_regs(A, range(V_F, V_F + 16), 2, l_ok)
    retry_tail(A, l_p, abort, cfg.get('e2_retry_sleep', 0), None)
    A(f'{l_ok}:')
    for x in fv_loads: A(x)
    stamp(A, cfg, 4)
    allT = list(range(V_TM, V_TM + 4)) + list(range(V_T0, V_T0 + 4)) + list(range(V_T1, V_T1 + 4))
    A(f'''v_max3_f32 v2, v{V_TM}, v{V_TM+1}, v{V_TM+2}
    v_max3_f32 v3, v{V_TM+3}, v{V_T0}, v{V_T0+1}
    v_max3_f32 v4, v{V_T0+2}, v{V_T0+3}, v{V_T1}
    v_max3_f32 v5, v{V_T1+1}, v{V_T1+2}, v{V_T1+3}
    v_max3_f32 v2, v2, v3, v4
    v_max_f32 v2, v2, v5
    v_mov_b32 v3, v2
    s_nop 1
    v_permlane16_swap_b32 v2, v3
    v_max_f32 v2, v2, v3
    v_mov_b32 v3, v2
    s_nop 1
    v_permlane32_swap_b32 v2, v3
    v_max_f32 v2, v2, v3
    v_mul_f32 v2, s{S_C}, v2''')
    for r in allT:
        A(f'v_fma_f32 v{r}, v{r}, s{S_C}, -v2')
    A(kxl[0])
    for i, r in enumerate(allT):
        A(f'v_exp_f32 v{r}, v{r}')
        if i == 7: A(kxl[1])
    A('s_nop 0')
    A(f'''v_cvt_pk_bf16_f32 v{V_PX}, v{V_T0}, v{V_T0+1}
    v_cvt_pk_bf16_f32 v{V_PX+1}, v{V_T0+2}, v{V_T0+3}
    v_cvt_pk_bf16_f32 v{V_PX+2}, v{V_T1}, v{V_T1+1}
    v_cvt_pk_bf16_f32 v{V_PX+3}, v{V_T1+2}, v{V_T1+3}
    v_cvt_pk_bf16_f32 v{V_PM}, v{V_TM}, v{V_TM+1}
    v_cvt_pk_bf16_f32 v{V_PM+1}, v{V_TM+2}, v{V_TM+3}''')
    A.nop(2)
    for tau in range(3):
        mfma32(A, v(V_D + tau * 4, 4), v(V_VPX + tau * 4, 4), v(V_PX, 4), '0')
    mfma32(A, v(V_TM, 4), a(A_ONE, 4), v(V_PX, 4), '0')
    stamp(A, cfg, 5)
    l_p = A.lab('fvgo'); l_ok = A.lab('fvok')
    A(f's_mov_b32 s{S_TO}, 0')
    A(f'{l_p}:')
    mc = max_chain(range(V_FV, V_FV + 16), 2)
    for ks in range(4):
        A(f's_waitcnt vmcnt({2+3-ks})')
        for tau in range(3):
            d = V_VPMA + tau * 4
            mfma32(A, v(d, 4), v(V_FV + ks * 4, 4), a(A_WO + (ks * 3 + tau) * 4, 4), '0' if ks == 0 else v(d, 4))
            if ks >= 1 and mc:
                j = 8 - len(mc)
                if (2 + 2 * j) // 4 <= ks - (0 if ks == 3 else 0) and (2 + 2 * j) // 4 <= ks:
                    A(mc.pop(0))
    for x in mc: A(x)
    A('v_cmp_eq_u32 vcc, -1, v2')
    A(f's_cbranch_vccz {l_ok}')
    for x in fv_loads: A(x)
    A('s_waitcnt vmcnt(0)')
    retry_tail(A, l_p, abort, 0, 2 if (cfg.get('stamps') or cfg.get('tot')) else None)
    A(f'{l_ok}:')
    stamp(A, cfg, 6)
    mfma16(A, v(V_TM, 4), a(A_ONE, 2), v(V_PM, 2), v(V_TM, 4))
    A.nop(cfg.get('vpm_nop', 4))
    for tau in range(3):
        d = V_VPMA + tau * 4
        A(f'v_cvt_pk_bf16_f32 v{V_VPM+tau*2}, v{d}, v{d+1}')
        A(f'v_cvt_pk_bf16_f32 v{V_VPM+tau*2+1}, v{d+2}, v{d+3}')
    A(f'v_rcp_f32 v2, v{V_TM}')
    A('s_nop 0')
    for tau in range(3):
        mfma16(A, v(V_D + tau * 4, 4), v(V_VPM + tau * 2, 2), v(V_PM, 2), v(V_D + tau * 4, 4))
    A(kxl[2])
    A.nop(5)
    for tau in range(3):
        for h in range(2):
            r = V_D + tau * 4 + h * 2
            A(f'v_pk_mul_f32 v[{r}:{r+1}], v[{r}:{r+1}], v[2:3] op_sel_hi:[1,0]')
        A(f'v_cvt_pk_bf16_f32 v{V_PX+0}, v{V_D+tau*4}, v{V_D+tau*4+1}' if False else f'v_cvt_pk_bf16_f32 v{V_T0+tau*2}, v{V_D+tau*4}, v{V_D+tau*4+1}')
        A(f'v_cvt_pk_bf16_f32 v{V_T0+tau*2+1}, v{V_D+tau*4+2}, v{V_D+tau*4+3}')
    A(f's_mov_b64 exec, s[{M_I8}:{M_I8+1}]')
    for tau in range(3):
        A(f'ds_write_b64 v{V_REDW}, v[{V_T0+tau*2}:{V_T0+tau*2+1}] offset:{tau*256}')
    A('s_mov_b64 exec, -1')
    A(kxl[3])
    A('s_waitcnt lgkmcnt(0)')
    A('s_barrier')
    stamp(A, cfg, 7)
    l_nored = A.lab('nored'); l_w3 = A.lab('w3')
    A(f's_cmp_ge_u32 s{S_W}, 3')
    A(f's_cbranch_scc1 {l_w3}')
    A(f'ds_read_b128 {v(V_F,4)}, v{V_REDR}')
    A('s_waitcnt lgkmcnt(0)')
    mfma32(A, v(V_E3A, 4), a(A_SEL, 4), v(V_F, 4), '0')
    A.nop(8)
    A(f'''v_cvt_pk_bf16_f32 v2, v{V_E3A}, v{V_E3A+1}
    v_cvt_pk_bf16_f32 v3, v{V_E3A+2}, v{V_E3A+3}
    v_min_u32 v2, s{S_SENT}, v2
    v_min_u32 v3, s{S_SENT}, v3
    s_mov_b64 exec, s[{M_E1ST}:{M_E1ST+1}]
    buffer_store_dwordx2 v[2:3], v{V_E3ST}, {ws}, s{S_E3C} offen sc1
    buffer_store_dwordx2 v[{V_SENT}:{V_SENT+1}], v{V_E3ST}, {ws}, s{S_E3CL} offen sc1
    s_mov_b64 exec, -1''')
    stamp(A, cfg, 8)
    c = Cap(); vpx_compute(c)
    e3pos = cfg.get('e3_in_vpx', 14)
    nk = 0
    for i, x in enumerate(c.l):
        A(x)
        if i in (1, 5, 9, 13) and i < e3pos: A(kxl[4 + nk]); nk += 1
        if i == e3pos: A(e3_loads[0]); A(e3_loads[1])
    late = kxl[4 + nk:8]
    stamp(A, cfg, 9)
    l_p = A.lab('e3poll'); l_ok = A.lab('e3ok')
    A(f's_mov_b32 s{S_TO}, 0')
    A('s_waitcnt vmcnt(0)')
    check_regs(A, range(V_E3P, V_E3P + 8), 2, l_ok)
    A(f'{l_p}:')
    if cfg.get('stamps') or cfg.get('tot'): A('s_add_u32 s93, s93, 1')
    for x in e3_loads: A(x)
    A('s_waitcnt vmcnt(0)')
    check_regs(A, range(V_E3P, V_E3P + 8), 2, l_ok)
    retry_tail(A, l_p, abort, cfg.get('e3_retry_sleep', 0), None)
    A(f'{l_ok}:')
    stamp(A, cfg, 10)
    mfma32(A, v(V_E3A, 4), a(A_SEL, 4), v(V_E3P, 4), '0')
    mfma32(A, v(V_E3A, 4), a(A_SEL, 4), v(V_E3P + 4, 4), v(V_E3A, 4))
    for x in late: A(x)
    A.nop(8)
    A(f'''v_cvt_pk_bf16_f32 v2, v{V_E3A}, v{V_E3A+1}
    v_cvt_pk_bf16_f32 v3, v{V_E3A+2}, v{V_E3A+3}
    v_min_u32 v2, s{S_SENT}, v2
    v_min_u32 v3, s{S_SENT}, v3
    s_mov_b64 exec, s[{M_E1ST}:{M_E1ST+1}]
    buffer_store_dwordx2 v[2:3], v{V_E1ST}, {ws}, s{S_E1N} offen {st}
    buffer_store_dwordx2 v[{V_SENT}:{V_SENT+1}], v{V_E1ST}, {ws}, s{S_E1CL} offen {st}
    s_mov_b64 exec, -1''')
    l_e = A.lab('e')
    A(f's_branch {l_e}')
    A(f'{l_w3}:')
    A(f'''s_mov_b64 exec, s[{M_L32}:{M_L32+1}]
    buffer_load_dword v{V_PFD}, v{V_PF}, {ws}, s{S_PFO} offen
    s_mov_b64 exec, 15
    s_add_u32 s{S_D0}, s{S_HFO}, {2 << 17}
    s_add_u32 s{S_D1}, s{S_HVO}, {2 << 16}
    buffer_load_dword v{V_PFD}, v{V_PFH}, {ws}, s{S_D0} offen
    buffer_load_dword v{V_PFD}, v{V_PFV}, {ws}, s{S_D1} offen
    s_mov_b64 exec, -1''')
    c = Cap(); vpx_compute(c)
    weave(A, c.l, kxl[4:8], start=2, every=6)
    if cfg.get('w3_sleep'):
        A(f's_sleep {cfg["w3_sleep"]}')
    A(f'{l_e}:')
    stamp(A, cfg, 11)
    A(f's_add_u32 s{S_STEP}, s{S_STEP}, 1')
    A(f's_branch {top}')

def gen_chain(cfg, name='chain_kernel'):
    P = 'CH'
    A = Asm(P)
    ws = f's[{S_WS}:{S_WS+3}]'
    if cfg.get('stamps') or cfg.get('tot'):
        A('s_memtime s[70:71]')
    A(f'''s_cmp_ge_u32 s2, 256
    s_cbranch_scc1 {P}_end
    s_load_dwordx2 s[46:47], s[0:1], {KA['ws']}
    s_getreg_b32 s{S_XCC}, hwreg(HW_REG_XCC_ID)
    s_and_b32 s{S_XCC}, s{S_XCC}, 7
    v_lshrrev_b32 v2, 6, v0
    v_and_b32 v1, 63, v0
    s_nop 0
    v_readfirstlane_b32 s{S_W}, v2
    s_waitcnt lgkmcnt(0)''')
    srd(A, S_WS, 46, 47, WS_BYTES)
    l_w = A.lab('rolewait'); l_poll = A.lab('rolepoll'); l_fast = A.lab('fast'); l_slow = A.lab('slow'); l_wr = A.lab('rolewr')
    A(f'''s_cmp_lg_u32 s{S_W}, 0
    s_cbranch_scc1 {l_w}
    s_mov_b64 exec, 1
    s_lshl_b32 s15, s{S_XCC}, 8
    s_add_u32 s15, s15, {CNT_OFF}
    v_mov_b32 v2, s15
    v_mov_b32 v3, 1
    buffer_atomic_add v3, v2, {ws}, 0 offen sc0
    s_waitcnt vmcnt(0)
    s_nop 0
    v_readfirstlane_b32 s{S_TK}, v3
    s_mov_b64 exec, -1
    v_lshlrev_b32 v2, 8, v1
    v_and_b32 v2, 0x7ff, v2
    v_add_u32 v2, {CNT_OFF}, v2
    v_mov_b32 v4, {PAR_OFF}
    s_mov_b32 s{S_TO}, 0
    {l_poll}:
    buffer_load_dword v3, v2, {ws}, 0 offen sc1
    buffer_load_dword v5, v4, {ws}, 0 offen sc1
    s_waitcnt vmcnt(0)
    s_nop 0''')
    for x in range(8):
        A(f'v_readlane_b32 s{48+x}, v3, {x}')
    A(f'''v_readfirstlane_b32 s{S_PAR}, v5
    s_nop 3
    s_min_u32 s15, s48, s49
    s_min_u32 s15, s15, s50
    s_min_u32 s15, s15, s51
    s_cmp_ge_u32 s15, 32
    s_cbranch_scc1 {l_fast}
    s_add_u32 s15, s48, s49
    s_add_u32 s15, s15, s50
    s_add_u32 s15, s15, s51
    s_add_u32 s15, s15, s52
    s_add_u32 s15, s15, s53
    s_add_u32 s15, s15, s54
    s_add_u32 s15, s15, s55
    s_cmp_ge_u32 s15, 256
    s_cbranch_scc1 {l_slow}
    s_sleep 1
    s_add_u32 s{S_TO}, s{S_TO}, 1
    s_cmp_lt_u32 s{S_TO}, {TIMEOUT}
    s_cbranch_scc1 {l_poll}
    s_mov_b32 s15, 999
    s_mov_b32 s{S_MODE}, 0
    s_branch {l_wr}
    {l_fast}:
    s_mov_b32 s{S_MODE}, 1
    s_lshl_b32 s15, s{S_XCC}, 5
    s_add_u32 s15, s15, s{S_TK}
    s_cmp_ge_u32 s{S_TK}, 32
    s_cselect_b32 s15, 999, s15
    s_cmp_ge_u32 s{S_XCC}, 4
    s_cselect_b32 s15, 999, s15
    s_branch {l_wr}
    {l_slow}:
    s_mov_b32 s{S_MODE}, 0
    s_mov_b32 s15, s{S_TK}''')
    for x in range(7):
        A(f'''s_cmp_gt_u32 s{S_XCC}, {x}
        s_cselect_b32 s56, s{48+x}, 0
        s_add_u32 s15, s15, s56''')
    A(f'''{l_wr}:
    v_mov_b32 v2, {ROLE}
    v_mov_b32 v3, s15
    v_mov_b32 v4, s{S_MODE}
    v_mov_b32 v5, s{S_PAR}
    ds_write_b32 v2, v3
    ds_write_b32 v2, v4 offset:4
    ds_write_b32 v2, v5 offset:8
    s_waitcnt lgkmcnt(0)
    {l_w}:
    s_barrier
    v_mov_b32 v2, {ROLE}
    ds_read_b32 v3, v2
    ds_read_b32 v4, v2 offset:4
    ds_read_b32 v5, v2 offset:8
    s_waitcnt lgkmcnt(0)
    s_nop 0
    v_readfirstlane_b32 s15, v3
    v_readfirstlane_b32 s{S_MODE}, v4
    v_readfirstlane_b32 s{S_PAR}, v5
    s_nop 3
    s_and_b32 s{S_PAR}, s{S_PAR}, 1
    s_cmp_ge_u32 s15, 128
    s_cbranch_scc1 {P}_worker
    s_lshr_b32 s{S_G}, s15, 4
    s_and_b32 s{S_TT}, s15, 15''')
    A(f'''v_and_b32 v6, 15, v1
    v_lshrrev_b32 v7, 4, v1
    v_and_b32 v8, 7, v1
    v_cmp_gt_u32 vcc, 8, v6
    s_mov_b64 s[{M_I8}:{M_I8+1}], vcc
    v_cmp_gt_u32 vcc, 32, v1
    s_mov_b64 s[{M_L32}:{M_L32+1}], vcc
    s_mov_b32 s{S_C}, 0x3e0293ee
    s_mov_b32 s{S_SENT}, 0xfffffffe
    v_mov_b32 v{V_SENT}, -1
    v_mov_b32 v{V_SENT+1}, -1''')
    import struct
    c = struct.unpack('<I', struct.pack('<f', 128 ** -0.5 * 1.4426950408889634))[0]
    A(f's_mov_b32 s{S_C}, {hex(c)}')
    A(f'''s_mul_i32 s15, s{S_G}, {E1_G}
    s_add_u32 s15, s15, {E1_OFF}
    s_lshl_b32 s19, s{S_W}, 10
    v_lshlrev_b32 v2, 4, v1
    v_add_u32 v{V_E1W}, s19, v2
    v_add_u32 v{V_E1LD}, s15, v{V_E1W}
    v_add_u32 v{V_E1W}, {MEML}, v{V_E1W}
    v_lshlrev_b32 v3, 7, v7
    v_lshlrev_b32 v4, 4, v8
    v_lshrrev_b32 v5, 3, v6
    v_lshlrev_b32 v5, 9, v5
    v_add3_u32 v{V_MEMR}, v3, v4, v5
    v_add_u32 v{V_MEMR}, {MEML}, v{V_MEMR}''')
    A(f'''s_mul_i32 s19, s{S_TT}, 5
    s_lshl_b32 s45, s{S_W}, 1
    s_add_u32 s19, s19, s45
    s_lshl_b32 s19, s19, 7
    s_add_u32 s19, s19, s15
    v_lshrrev_b32 v2, 3, v6
    v_lshlrev_b32 v2, 7, v2
    v_lshlrev_b32 v3, 3, v7
    v_add3_u32 v{V_E1ST}, v2, v3, v4
    v_add_u32 v{V_E1ST}, s19, v{V_E1ST}
    s_mov_b64 s[{M_E1ST}:{M_E1ST+1}], s[{M_L32}:{M_L32+1}]
    s_cmp_eq_u32 s{S_W}, 2
    s_cbranch_scc0 {P}_e1m
    s_and_b64 s[{M_E1ST}:{M_E1ST+1}], s[{M_L32}:{M_L32+1}], s[{M_I8}:{M_I8+1}]
    {P}_e1m:''')
    A(f'''s_mul_i32 s15, s{S_G}, {E2_G}
    s_add_u32 s15, s15, {E2_OFF}
    s_and_b32 s19, s{S_W}, 1
    s_lshr_b32 s45, s{S_W}, 1
    v_lshrrev_b32 v2, 1, v7
    s_lshl_b32 s46, s19, 1
    v_add_u32 v2, s46, v2
    v_and_b32 v3, 1, v7
    v_lshlrev_b32 v3, 3, v3               ; (fg&1)*8
    v_lshlrev_b32 v4, 4, v6               ; i*16
    v_lshlrev_b32 v5, 8, v2
    v_add3_u32 v5, v5, v3, v4
    s_lshl_b32 s46, s45, 7                ; isK*128
    v_add_u32 v5, s46, v5                 ; inner F
    s_lshl_b32 s46, s{S_TT}, 10
    s_add_u32 s46, s46, s15
    v_add_u32 v{V_FST}, s46, v5
    v_lshlrev_b32 v9, 7, v2
    v_add3_u32 v9, v9, v3, v4
    s_lshl_b32 s46, s{S_TT}, 9
    s_add_u32 s46, s46, s15
    s_add_u32 s46, s46, 16384
    v_add_u32 v{V_FVST}, s46, v9
    s_lshl_b32 s46, s{S_G}, 4
    s_add_u32 s46, s46, s{S_TT}
    s_lshl_b32 s47, s46, 10
    s_add_u32 s47, s47, {HF_OFF}
    v_add_u32 v{V_HF}, s47, v5
    s_lshl_b32 s47, s46, 9
    s_add_u32 s47, s47, {HV_OFF}
    v_add_u32 v{V_HV}, s47, v9
    v_lshlrev_b32 v2, 8, v1
    s_lshl_b32 s47, s46, 10
    s_add_u32 s47, s47, {HF_OFF + 128}
    v_add_u32 v{V_PFH}, s47, v2
    v_lshlrev_b32 v2, 7, v1
    s_lshl_b32 s47, s46, 9
    s_add_u32 s47, s47, {HV_OFF}
    v_add_u32 v{V_PFV}, s47, v2
    v_lshlrev_b32 v2, 4, v1
    s_lshl_b32 s46, s{S_W}, 12
    s_add_u32 s46, s46, s15
    v_add_u32 v{V_FLD}, s46, v2
    v_lshlrev_b32 v3, 7, v7
    v_lshlrev_b32 v4, 4, v8
    v_add_u32 v3, v3, v4
    s_lshl_b32 s46, s{S_W}, 11
    s_add_u32 s46, s46, s15
    s_add_u32 s46, s46, 16384
    v_add_u32 v{V_FVLD}, s46, v3''')
    A(f'''s_lshl_b32 s46, s{S_G}, 2
    s_add_u32 s46, s46, s{S_W}           ; h
    s_lshl_b32 s47, s46, 19
    v_add_u32 v{V_KX0}, s47, v2
    v_add_u32 v{V_KX1}, 4096, v{V_KX0}
    v_add_u32 v{V_VX0}, {VX_OFF}, v{V_KX0}
    v_add_u32 v{V_VX1}, {VX_OFF}, v{V_KX1}''')
    A(f'''v_and_b32 v2, 31, v1
    s_lshl_b32 s46, s{S_TT}, 5
    v_add_u32 v2, s46, v2
    v_lshrrev_b32 v3, 8, v2
    v_mul_u32_u24 v3, 0x1002, v3
    v_lshlrev_b32 v3, 12, v3
    v_lshrrev_b32 v4, 6, v2
    v_and_b32 v4, 3, v4
    s_lshl_b32 s46, s{S_G}, 2
    v_add_u32 v4, s46, v4
    v_lshlrev_b32 v4, 19, v4
    v_and_b32 v2, 63, v2
    v_lshlrev_b32 v2, 7, v2
    v_add3_u32 v{V_PF}, v2, v3, v4''')
    assert KX_OFF == 0 and VX_OFF == 1 << 24
    A(f'''v_lshlrev_b32 v{V_L16}, 4, v1
    s_lshl_b32 s46, s{S_W}, 13
    s_add_u32 s46, s46, {KXL}
    v_add_u32 v{V_KLR}, s46, v{V_L16}''')
    A(f'''s_mul_i32 s47, s{S_W}, 768
    s_add_u32 s47, s47, {RED}
    v_lshrrev_b32 v2, 1, v7
    v_lshlrev_b32 v2, 7, v2
    v_lshlrev_b32 v3, 4, v6
    v_and_b32 v4, 1, v7
    v_lshlrev_b32 v4, 3, v4
    v_add3_u32 v{V_REDW}, v2, v3, v4
    v_add_u32 v{V_REDW}, s47, v{V_REDW}
    v_mul_u32_u24 v2, 768, v7
    s_min_u32 s47, s{S_W}, 2
    s_lshl_b32 s47, s47, 8
    s_add_u32 s47, s47, {RED}
    v_add3_u32 v{V_REDR}, v2, v3, s47''')
    def phys(reg):
        A(f'''v_lshrrev_b32 v2, 13, v{reg}
        v_lshlrev_b32 v2, 14, v2
        v_and_b32 v{reg}, 0x1fff, v{reg}
        v_or_b32 v{reg}, v2, v{reg}
        v_add_u32 v{reg}, s45, v{reg}''')
    A(f'''s_lshl_b32 s45, s{S_PAR}, 13
    s_add_u32 s45, s45, {E3_OFF}
    s_mul_i32 s46, s{S_TT}, 5120
    s_mul_i32 s47, s{S_G}, 640
    s_add_u32 s47, s47, s46
    s_min_u32 s15, s{S_W}, 2
    s_lshl_b32 s15, s15, 8
    s_add_u32 s47, s47, s15
    v_lshlrev_b32 v3, 4, v6
    v_and_b32 v4, 1, v7
    v_lshlrev_b32 v4, 3, v4
    v_add3_u32 v{V_E3ST}, v3, v4, s47
    v_min_u32 v{V_E3ST}, 81912, v{V_E3ST}''')
    phys(V_E3ST)
    A(f'''s_cmp_eq_u32 s{S_W}, 2
    s_cselect_b32 s47, 7, 15
    v_and_b32 v3, s47, v6
    s_min_u32 s47, s{S_W}, 2
    s_lshl_b32 s47, s47, 4
    v_add_u32 v3, s47, v3
    v_lshlrev_b32 v3, 4, v3
    v_mul_u32_u24 v4, 640, v7
    v_add3_u32 v{V_E3L0}, v3, v4, s46
    v_add_u32 v{V_E3L1}, 2560, v{V_E3L0}''')
    phys(V_E3L0); phys(V_E3L1)
    A(f'''v_mov_b32 v2, 0xff800000
    v_mov_b32 v3, 0
    v_cndmask_b32 v{V_CINIT}, v3, v2, s[{M_L32}:{M_L32+1}]
    v_mov_b32 v{V_CINIT+1}, v{V_CINIT}
    v_mov_b32 v{V_CINIT+2}, v{V_CINIT}
    v_mov_b32 v{V_CINIT+3}, v{V_CINIT}
    v_mov_b32 v2, 0x3f803f80''')
    for r in range(4):
        A(f'v_accvgpr_write_b32 a{A_ONE+r}, v2')
    A(f'''v_and_b32 v3, 1, v6
    v_lshlrev_b32 v3, 4, v3
    v_mov_b32 v4, 0x3f80
    v_lshlrev_b32 v4, v3, v4
    v_lshrrev_b32 v5, 1, v6''')
    for r in range(4):
        A(f'''v_cmp_eq_u32 vcc, {r}, v5
        s_nop 1
        v_cndmask_b32 v2, 0, v4, vcc
        v_accvgpr_write_b32 a{A_SEL+r}, v2''')
    A(f'''s_load_dwordx2 s[46:47], s[0:1], {KA['Wq']}
    s_load_dwordx2 s[48:49], s[0:1], {KA['Wk']}
    s_load_dwordx2 s[50:51], s[0:1], {KA['Wv']}
    s_load_dwordx2 s[52:53], s[0:1], {KA['Wo']}
    s_load_dwordx2 s[54:55], s[0:1], {KA['mem0']}
    s_lshr_b32 s15, s{S_TT}, 2
    s_lshl_b32 s19, s{S_G}, 2
    s_add_u32 s15, s15, s19              ; h_p
    s_lshl_b32 s15, s15, 8               ; h_p*256 bytes
    s_and_b32 s19, s{S_TT}, 3
    s_lshl_b32 s19, s19, 6
    s_add_u32 s15, s15, s19              ; + qd*64
    v_lshrrev_b32 v2, 2, v0
    v_lshlrev_b32 v2, 13, v2
    v_and_b32 v3, 3, v0
    v_lshlrev_b32 v3, 4, v3
    v_add3_u32 v2, v2, v3, s15
    v_lshlrev_b32 v3, 4, v0
    v_add_u32 v3, {STAGE}, v3
    s_waitcnt lgkmcnt(0)''')
    for pi, sp in enumerate((46, 48, 50)):
        srd(A, S_T, sp, sp + 1, 640 * 8192)
        A('s_mov_b32 s19, 0')
        for r in range(10):
            A(f'buffer_load_dwordx4 {v(64+r*4,4)}, v2, s[{S_T}:{S_T+3}], s19 offen')
            if r < 9:
                A(f's_add_u32 s19, s19, {64*8192}')
        A('s_waitcnt vmcnt(0)')
        for r in range(10):
            A(f'ds_write_b128 v3, {v(64+r*4,4)} offset:{pi*40960 + r*4096}' if pi * 40960 + r * 4096 < 65536 else
              f'ds_write_b128 v4, {v(64+r*4,4)} offset:{pi*40960 + r*4096 - 65536}')
            if pi == 0 and r == 0:
                A('v_add_u32 v4, 0x10000, v3')
    A('s_waitcnt lgkmcnt(0)')
    A('s_barrier')
    A(f'''v_lshrrev_b32 v2, 2, v6            ; r4
    v_lshlrev_b32 v3, 3, v7                ; 8kg
    v_add_u32 v2, v2, v3
    v_lshlrev_b32 v2, 6, v2
    v_and_b32 v3, 3, v1
    v_lshlrev_b32 v3, 3, v3
    s_and_b32 s15, s{S_W}, 1
    s_lshl_b32 s15, s15, 5
    s_lshr_b32 s19, s{S_W}, 1
    s_mul_i32 s19, s19, 40960
    s_add_u32 s19, s19, s15
    s_add_u32 s19, s19, {STAGE}
    v_add3_u32 v4, v2, v3, s19             ; q/k panel
    s_add_u32 s15, s15, {STAGE + 2*40960}
    v_add3_u32 v5, v2, v3, s15             ; v panel''')
    for ks in range(20):
        for hf in range(2):
            A(f'ds_read_b64_tr_b16 {a(A_WA+ks*4+hf*2,2)}, v4 offset:{ks*2048 + hf*256}')
            A(f'ds_read_b64_tr_b16 {a(A_WV+ks*4+hf*2,2)}, v5 offset:{ks*2048 + hf*256}')
        if ks % 3 == 2:
            A('s_waitcnt lgkmcnt(0)')
    A('s_waitcnt lgkmcnt(0)')
    A('s_barrier')
    srd(A, S_T, 52, 53, 4096 * 1280)
    A(f'''s_lshl_b32 s15, s{S_G}, 2
    s_add_u32 s15, s15, s{S_W}
    s_mul_i32 s15, s15, {128*1280}
    s_mul_i32 s19, s{S_TT}, 80
    s_add_u32 s15, s15, s19
    s_mul_i32 s45, s{S_W}, {128*96}
    s_add_u32 s45, s45, {STAGE}
    s_mov_b32 s46, 52429''')
    for r in range(10):
        A(f'''v_add_u32 v2, {r*64}, v1
        v_mul_lo_u32 v3, v2, s46
        v_lshrrev_b32 v3, 18, v3
        v_mul_u32_u24 v4, 5, v3
        v_sub_u32 v4, v2, v4                ; piece
        v_lshlrev_b32 v4, 4, v4
        v_mul_u32_u24 v5, 1280, v3
        v_add3_u32 v5, v5, v4, s15
        buffer_load_dwordx4 {v(64+r*4,4)}, v5, s[{S_T}:{S_T+3}], 0 offen
        v_mul_u32_u24 v5, 96, v3
        v_add3_u32 v{110+r}, v5, v4, s45''')
    A(f'''v_mov_b32 v2, 0
    v_mov_b32 v3, 0
    v_mov_b32 v4, 0
    v_mov_b32 v5, 0
    v_mul_u32_u24 v9, 96, v1
    v_add_u32 v9, s45, v9
    ds_write_b128 v9, v[2:5] offset:80
    ds_write_b128 v9, v[2:5] offset:{80+64*96}
    s_waitcnt vmcnt(0)''')
    for r in range(10):
        A(f'ds_write_b128 v{110+r}, {v(64+r*4,4)}')
    A(f'''s_waitcnt lgkmcnt(0)
    v_lshrrev_b32 v2, 2, v6
    v_lshlrev_b32 v3, 3, v7
    v_add_u32 v2, v2, v3
    v_mul_u32_u24 v2, 96, v2
    v_and_b32 v3, 3, v1
    v_lshlrev_b32 v3, 3, v3
    v_add3_u32 v4, v2, v3, s45''')
    for ks in range(4):
        for tau in range(3):
            for hf in range(2):
                A(f'ds_read_b64_tr_b16 {a(A_WO+(ks*3+tau)*4+hf*2,2)}, v4 offset:{(32*ks+4*hf)*96 + tau*32}')
        A('s_waitcnt lgkmcnt(0)')
    srd(A, S_T, 54, 55, 8 * 1280)
    A(f'''v_mul_u32_u24 v2, 1280, v8
    v_lshrrev_b32 v3, 3, v1
    v_lshlrev_b32 v3, 4, v3
    s_lshl_b32 s15, s{S_W}, 7
    v_add3_u32 v2, v2, v3, s15
    buffer_load_dwordx4 {v(V_E1P,4)}, v2, s[{S_T}:{S_T+3}], 0 offen
    buffer_load_dwordx4 {v(V_E1P+4,4)}, v2, s[{S_T}:{S_T+3}], 0 offen offset:512
    v_mov_b32 v{V_E1P+8}, 0
    v_mov_b32 v{V_E1P+9}, 0
    v_mov_b32 v{V_E1P+10}, 0
    v_mov_b32 v{V_E1P+11}, 0
    s_cmp_ge_u32 s{S_W}, 2
    s_cbranch_scc1 {P}_m0
    buffer_load_dwordx4 {v(V_E1P+8,4)}, v2, s[{S_T}:{S_T+3}], 0 offen offset:1024
    {P}_m0:''')
    load_kx(A, '0')
    load_vx(A, '0')
    A(f'''s_mov_b64 exec, s[{M_L32}:{M_L32+1}]
    s_mov_b32 s19, 8192
    buffer_load_dword v{V_PFD}, v{V_PF}, {ws}, s19 offen
    buffer_load_dword v{V_PFD}, v{V_PF}, {ws}, 0 offen
    s_mov_b64 exec, 15
    buffer_load_dword v{V_PFD}, v{V_PFH}, {ws}, 0 offen
    buffer_load_dword v{V_PFD}, v{V_PFV}, {ws}, 0 offen
    s_mov_b32 s19, {1 << 17}
    s_mov_b32 s15, {1 << 16}
    buffer_load_dword v{V_PFD}, v{V_PFH}, {ws}, s19 offen
    buffer_load_dword v{V_PFD}, v{V_PFV}, {ws}, s15 offen
    s_mov_b64 exec, -1''')
    A('s_waitcnt vmcnt(0)')
    vpx_compute(A)
    A(f's_mov_b32 s{S_STEP}, 0')
    if cfg.get('stamps') or cfg.get('tot'):
        for i in range(20):
            A(f's_mov_b32 s{74+i}, 0')
        A('''s_memtime s[56:57]
        s_waitcnt lgkmcnt(0)
        s_mov_b32 s58, s56
        s_mov_b32 s72, s56
        s_sub_u32 s66, s56, s70''')
    A('s_barrier')
    A(f's_cmp_eq_u32 s{S_MODE}, 0')
    A(f's_cbranch_scc1 {P}_slowloop')
    gen_loop(A, cfg, True, P)
    A(f'{P}_slowloop:')
    gen_loop(A, cfg, False, P)
    A(f'{P}_abort:')
    A(f'''s_load_dwordx2 s[46:47], s[0:1], {KA['dbg']}
    s_waitcnt lgkmcnt(0)
    s_mov_b64 exec, 1
    v_mov_b32 v2, 0
    s_or_b32 s15, s{S_STEP}, 0xdead0000
    v_mov_b32 v3, s15
    global_store_dword v2, v3, s[46:47]
    s_mov_b64 exec, -1''')
    A(f'{P}_done:')
    if cfg.get('stamps') or cfg.get('tot'):
        A('''s_memtime s[56:57]
        s_waitcnt lgkmcnt(0)
        s_sub_u32 s67, s56, s72''')
        A(f'''s_lshl_b32 s15, s{S_G}, 4
        s_add_u32 s15, s15, s{S_TT}
        s_lshl_b32 s15, s15, 2
        s_add_u32 s15, s15, s{S_W}
        s_lshl_b32 s15, s15, 7
        s_add_u32 s15, s15, {STAMP_OFF}
        s_mov_b64 exec, 1
        v_mov_b32 v2, s15
        v_mov_b32 v40, s66
        v_mov_b32 v41, s67''')
        for i in range(22):
            A(f'v_mov_b32 v{42+i}, s{74+i}')
        for q in range(6):
            A(f'buffer_store_dwordx4 v[{40+4*q}:{43+4*q}], v2, {ws}, 0 offen offset:{16*q}')
    A('s_waitcnt vmcnt(0)')
    A(f's_branch {P}_end')
    A(f'{P}_worker:')
    if cfg.get('workers'):
        cfg['workers'](A, P)
    A(f'{P}_end:')
    A('s_endpgm')
    return kernel_text(name, A.text(), 512, 96, 256)
```

```python
class Asm:
    def __init__(self, prefix='L'):
        self.lines = []
        self.n = 0
        self.prefix = prefix
    def __call__(self, s):
        for l in s.split('\n'):
            l = l.strip()
            if not l:
                continue
            if l.endswith(':') and ' ' not in l:
                self.lines.append(l)
            else:
                self.lines.append('    ' + l)
    def lab(self, base='x'):
        self.n += 1
        return '%s_%s%d' % (self.prefix, base, self.n)
    def nop(self, n):
        while n > 0:
            k = min(n, 16)
            self('s_nop %d' % (k - 1))
            n -= k
    def text(self):
        return '\n'.join(self.lines) + '\n'

def v(i, n=1):
    return 'v%d' % i if n == 1 else 'v[%d:%d]' % (i, i + n - 1)
def a(i, n=1):
    return 'a%d' % i if n == 1 else 'a[%d:%d]' % (i, i + n - 1)
def s(i, n=1):
    return 's%d' % i if n == 1 else 's[%d:%d]' % (i, i + n - 1)

MB = 1 << 20
WS_BYTES = 268435456
KA = dict(u=0, A_re=8, A_im=16, B_re=24, B_im=32, C_re=40, C_im=48, log_dt=56, Dskip=64,
          x=72, mem0=80, Wq=88, Wk=96, Wv=104, Wo=112, seg=120, out=128, dbg=136, ws=144)
KX_OFF = 0
VX_OFF = 16 * MB
QX_OFF = 32 * MB
OX_OFF = 48 * MB
HF_OFF = 64 * MB
HV_OFF = 72 * MB
E1_OFF = 76 * MB
E1_G, E1_S = 4 * 16384, 16384
E2_OFF = 77 * MB
E2_G, E2_S = 4 * 32768, 32768
E3_OFF = 80 * MB
E3_S = 163840
CNT_OFF = 82 * MB
PAR_OFF = CNT_OFF + 4096
STAMP_OFF = 83 * MB
WOF_OFF = 84 * MB

def srd(A, d, base_lo, base_hi, nbytes):
    A(f'''s_mov_b32 s{d}, s{base_lo}
    s_and_b32 s{d+1}, s{base_hi}, 0xffff
    s_mov_b32 s{d+2}, {nbytes}
    s_mov_b32 s{d+3}, 0x20000''')

def kernel_desc(name, nvgpr, nsgpr, accum):
    return f'''.section .rodata,"a"
.p2align 6
.amdhsa_kernel {name}
  .amdhsa_next_free_vgpr {nvgpr}
  .amdhsa_next_free_sgpr {nsgpr}
  .amdhsa_accum_offset {accum}
  .amdhsa_group_segment_fixed_size 0
  .amdhsa_kernarg_size 152
  .amdhsa_user_sgpr_count 2
  .amdhsa_user_sgpr_kernarg_segment_ptr 1
  .amdhsa_system_sgpr_workgroup_id_x 1
.end_amdhsa_kernel
'''
def kernel_text(name, body, nvgpr, nsgpr, accum):
    return f'''.text
.globl {name}
.p2align 8
.type {name},@function
{name}:
{body}
''' + kernel_desc(name, nvgpr, nsgpr, accum)
```

```python
from common import *

QKV_LDS = 98304
XBUF = 49152
S_WS = 4
S_W = 8
S_X = 12
S_WAVE, S_P, S_SEG, S_SEGE, S_OUT, S_T0, S_T1, S_XO, S_BUF = 16, 17, 18, 19, 20, 21, 22, 23, 24
V_XO = 8
V_BR = 14
V_ST = 15
V_ACC = 16
V_B = 32
V_P = 56
NB = 6

def gemm_pair(A, P, cfg={}):
    ws = f's[{S_WS}:{S_WS+3}]'
    lq = A.lab('mq'); lk = A.lab('mk'); lj = A.lab('mj')
    A(f'''s_lshr_b32 s{S_T0}, s{S_P}, 4
    s_cmp_eq_u32 s{S_T0}, 0
    s_cbranch_scc1 {lq}
    s_cmp_eq_u32 s{S_T0}, 1
    s_cbranch_scc1 {lk}
    s_load_dwordx2 s[26:27], s[0:1], {KA['Wv']}
    s_mov_b32 s{S_OUT}, {VX_OFF}
    s_branch {lj}
    {lq}:
    s_load_dwordx2 s[26:27], s[0:1], {KA['Wq']}
    s_mov_b32 s{S_OUT}, {QX_OFF}
    s_branch {lj}
    {lk}:
    s_load_dwordx2 s[26:27], s[0:1], {KA['Wk']}
    s_mov_b32 s{S_OUT}, {KX_OFF}
    {lj}:
    s_load_dwordx2 s[28:29], s[0:1], {KA['x']}
    s_and_b32 s{S_T0}, s{S_P}, 15
    s_lshl_b32 s{S_T0}, s{S_T0}, 1          ; h0
    s_waitcnt lgkmcnt(0)''')
    srd(A, S_W, 26, 27, 640 * 8192)
    srd(A, S_X, 28, 29, 2048 * 1280)
    A(f'''s_lshr_b32 s{S_T1}, s{S_WAVE}, 2
    s_add_u32 s{S_T1}, s{S_T1}, s{S_T0}
    s_lshl_b32 s{S_T1}, s{S_T1}, 19
    s_add_u32 s{S_OUT}, s{S_OUT}, s{S_T1}
    s_and_b32 s{S_T1}, s{S_WAVE}, 3
    s_lshl_b32 s{S_T1}, s{S_T1}, 10
    s_add_u32 s{S_OUT}, s{S_OUT}, s{S_T1}''')
    A(f'''v_and_b32 v2, 31, v1
    v_lshrrev_b32 v3, 4, v2
    v_lshlrev_b32 v3, 12, v3
    v_and_b32 v4, 15, v1
    v_lshlrev_b32 v4, 4, v4
    v_lshrrev_b32 v5, 5, v1
    v_lshlrev_b32 v6, 8, v5
    v_add3_u32 v{V_ST}, v3, v4, v6
    v_mul_u32_u24 v3, 1296, v2
    v_lshlrev_b32 v5, 4, v5
    v_add_u32 v{V_BR}, v3, v5''')
    A('s_mov_b32 s25, 53020')
    for r in range(6):
        A(f'''v_add_u32 v2, {r*512}, v0
        s_mov_b32 s25, 51782
        v_mul_lo_u32 v3, v2, s25
        v_lshrrev_b32 v3, 22, v3              ; row = G/81
        v_mul_u32_u24 v4, 81, v3
        v_sub_u32 v4, v2, v4                  ; col
        v_min_u32 v4, 79, v4
        v_min_u32 v3, 31, v3
        v_mul_u32_u24 v3, 1280, v3
        v_lshlrev_b32 v4, 4, v4
        v_add_u32 v{V_XO+r}, v3, v4''')
    A(f'''v_lshrrev_b32 v2, 4, v0
    v_lshlrev_b32 v2, 13, v2
    v_and_b32 v3, 15, v0
    v_lshlrev_b32 v3, 4, v3
    s_lshl_b32 s{S_T1}, s{S_T0}, 8
    v_add3_u32 v2, v2, v3, s{S_T1}
    s_lshl_b32 s25, s{S_WAVE}, 10           ; wave*64*16
    v_lshrrev_b32 v3, 4, v1                 ; gq
    v_lshrrev_b32 v4, 1, v3                 ; hi
    v_lshlrev_b32 v4, 3, v4
    v_and_b32 v5, 15, v1
    v_lshrrev_b32 v5, 2, v5                 ; r4
    v_add_u32 v4, v4, v5
    v_lshlrev_b32 v4, 8, v4                 ; (8hi + r4)*256
    v_and_b32 v3, 1, v3
    v_lshlrev_b32 v3, 5, v3                 ; 16*(gq&1)*2
    v_and_b32 v5, 3, v1
    v_lshlrev_b32 v5, 3, v5                 ; c4*8
    v_add3_u32 v4, v4, v3, v5
    s_lshr_b32 s{S_T1}, s{S_WAVE}, 2
    s_mul_i32 s{S_T1}, s{S_T1}, 40960
    s_and_b32 s26, s{S_WAVE}, 3
    s_lshl_b32 s26, s26, 6
    s_add_u32 s{S_T1}, s{S_T1}, s26
    v_add_u32 v4, s{S_T1}, v4''')
    for cc in range(4):
        if cc > 0:
            A('s_barrier')
        for r in range(10):
            so = (cc * 160 + (r % 5) * 32) * 8192 + (r // 5) * 256
            A(f'''s_mov_b32 s26, {so}
            s_add_u32 m0, s25, {r * 8192}
            s_nop 0
            buffer_load_dwordx4 v2, s[{S_W}:{S_W+3}], s26 offen lds''')
        A('s_waitcnt vmcnt(0)')
        A('s_barrier')
        for ks in range(10):
            for hf in range(2):
                A(f'ds_read_b64_tr_b16 {a((cc*10+ks)*4+hf*2,2)}, v4 offset:{(16*ks+4*hf)*256}')
            if ks % 4 == 3:
                A('s_waitcnt lgkmcnt(0)')
        A('s_waitcnt lgkmcnt(0)')
    A('s_barrier')
    if cfg.get('stamps'):
        A('s_memtime s[34:35]\ns_waitcnt lgkmcnt(0)')
    def issue_x(bufreg):
        for r in range(6):
            A(f'''s_add_u32 m0, s{bufreg}, {r * 8192}
            s_nop 0
            buffer_load_dwordx4 v{V_XO+r}, s[{S_X}:{S_X+3}], s{S_XO} offen lds''')
    A(f'''s_mul_i32 s{S_XO}, s{S_SEG}, 40960
    s_mov_b32 s{S_BUF}, s25''')
    issue_x(S_BUF)
    top = A.lab('top'); nonext = A.lab('nonext')
    A(f'{top}:')
    A('s_waitcnt vmcnt(0)')
    A('s_barrier')
    A(f'''s_sub_u32 s26, s{S_BUF}, s25
    v_add_u32 v7, s26, v{V_BR}
    s_xor_b32 s27, s26, {XBUF}
    s_add_u32 s{S_BUF}, s27, s25
    s_add_u32 s26, s{S_SEG}, 1
    s_cmp_ge_u32 s26, s{S_SEGE}
    s_cbranch_scc1 {nonext}
    s_add_u32 s{S_XO}, s{S_XO}, 40960''')
    issue_x(S_BUF)
    A(f'{nonext}:')
    for k in range(NB - 1):
        A(f'ds_read_b128 {v(V_B + k*4, 4)}, v7 offset:{k*32}')
    for ks in range(40):
        nxt = ks + NB - 1
        if nxt < 40:
            A(f'ds_read_b128 {v(V_B + (nxt % NB)*4, 4)}, v7 offset:{nxt*32}')
            A(f's_waitcnt lgkmcnt({NB-1})')
        else:
            A(f's_waitcnt lgkmcnt({39 - ks})')
        A(f'v_mfma_f32_32x32x16_bf16 {v(V_ACC,16)}, {a(ks*4,4)}, {v(V_B + (ks % NB)*4, 4)}, {"0" if ks == 0 else v(V_ACC,16)}')
    A.nop(12)
    for q in range(4):
        A(f'v_cvt_pk_bf16_f32 v{V_P+2*q}, v{V_ACC+4*q}, v{V_ACC+4*q+1}')
        A(f'v_cvt_pk_bf16_f32 v{V_P+2*q+1}, v{V_ACC+4*q+2}, v{V_ACC+4*q+3}')
    A('s_nop 1')
    for m in range(2):
        A(f'v_permlane32_swap_b32 v{V_P+4*m}, v{V_P+4*m+2}')
        A(f'v_permlane32_swap_b32 v{V_P+4*m+1}, v{V_P+4*m+3}')
    A(f'''s_lshl_b32 s26, s{S_SEG}, 13
    s_add_u32 s26, s26, s{S_OUT}
    s_nop 0
    buffer_store_dwordx4 {v(V_P,4)}, v{V_ST}, {ws}, s26 offen
    buffer_store_dwordx4 {v(V_P+4,4)}, v{V_ST}, {ws}, s26 offen offset:512
    s_add_u32 s{S_SEG}, s{S_SEG}, 1
    s_cmp_lt_u32 s{S_SEG}, s{S_SEGE}
    s_cbranch_scc1 {top}''')

def gen_qkv(cfg, name='qkv_kernel'):
    P = 'QK'
    A = Asm(P)
    ws = f's[{S_WS}:{S_WS+3}]'
    A(f'''s_cmp_ge_u32 s2, 256
    s_cbranch_scc1 {P}_end
    s_load_dwordx2 s[26:27], s[0:1], {KA['ws']}
    v_lshrrev_b32 v2, 6, v0
    v_and_b32 v1, 63, v0
    s_nop 0
    v_readfirstlane_b32 s{S_WAVE}, v2
    s_waitcnt lgkmcnt(0)''')
    srd(A, S_WS, 26, 27, WS_BYTES)
    A(f'''s_and_b32 s27, s2, 7
    s_lshr_b32 s28, s2, 3
    s_cmp_ge_u32 s28, 30
    s_cbranch_scc1 {P}_prep
    s_mul_hi_u32 s{S_P}, s28, {(2**32 + 4)//5}
    s_mul_i32 s26, s{S_P}, 5
    s_sub_u32 s26, s28, s26
    s_mul_i32 s27, s27, 6
    s_add_u32 s{S_P}, s{S_P}, s27
    s_mul_i32 s{S_SEG}, s26, 13
    s_add_u32 s{S_SEGE}, s{S_SEG}, 13
    s_min_u32 s{S_SEGE}, s{S_SEGE}, 64''')
    if cfg.get('stamps'):
        A('s_memtime s[32:33]\ns_waitcnt lgkmcnt(0)')
    gemm_pair(A, P, cfg)
    if cfg.get('stamps'):
        A(f'''s_waitcnt vmcnt(0)
        s_memtime s[36:37]
        s_waitcnt lgkmcnt(0)
        s_sub_u32 s36, s36, s34
        s_sub_u32 s34, s34, s32
        s_lshl_b32 s26, s2, 3
        s_add_u32 s26, s26, s{S_WAVE}
        s_lshl_b32 s26, s26, 3
        s_add_u32 s26, s26, {STAMP_OFF}
        v_mov_b32 v2, s26
        v_mov_b32 v4, s34
        v_mov_b32 v5, s36
        s_mov_b64 exec, 1
        buffer_store_dwordx2 v[4:5], v2, {ws}, 0 offen
        s_waitcnt vmcnt(0)''')
    A(f's_branch {P}_end')
    A(f'{P}_prep:')
    A(f'''s_sub_u32 s28, s28, 30
    s_lshl_b32 s28, s28, 3
    s_add_u32 s28, s28, s27
    v_mov_b32 v4, -1
    v_mov_b32 v5, -1
    v_mov_b32 v6, -1
    v_mov_b32 v7, -1
    v_lshlrev_b32 v2, 4, v0''')
    for base, rounds in ((E1_OFF, 256), (E3_OFF, 96)):
        lp = A.lab('clr')
        A(f'''s_lshl_b32 s26, s28, 13
        s_add_u32 s26, s26, {base}
        s_mov_b32 s29, s28
        {lp}:
        buffer_store_dwordx4 v[4:7], v2, {ws}, s26 offen
        s_add_u32 s26, s26, {16*8192}
        s_add_u32 s29, s29, 16
        s_cmp_lt_u32 s29, {rounds}
        s_cbranch_scc1 {lp}''')
    l1 = A.lab('nz')
    A(f'''s_cmp_lg_u32 s28, 0
    s_cbranch_scc1 {l1}
    v_mov_b32 v4, 0
    v_lshlrev_b32 v2, 2, v0
    s_mov_b32 s26, {CNT_OFF}
    buffer_store_dword v4, v2, {ws}, s26 offen
    {l1}:
    s_cmp_lg_u32 s28, 1
    s_cbranch_scc1 {P}_end
    s_cmp_lg_u32 s{S_WAVE}, 0
    s_cbranch_scc1 {P}_end
    s_getreg_b32 s29, hwreg(HW_REG_XCC_ID)
    s_and_b32 s29, s29, 7
    s_mov_b64 exec, 1
    v_mov_b32 v4, 0
    s_mov_b32 s30, 0
    s_mov_b32 s31, 0''')
    CAL = E3_OFF + (1 << 20)
    for k in range(8):
        for c in range(2):
            A(f'''v_mov_b32 v2, {CAL + k*16384 + c*8192 + k*256}
            buffer_store_dword v4, v2, {ws}, 0 offen sc1''')
    A('s_waitcnt vmcnt(0)')
    for k in range(8):
        for c in range(2):
            A(f'''v_mov_b32 v2, {CAL + k*16384 + c*8192 + k*256}
            s_memtime s[32:33]
            s_waitcnt lgkmcnt(0)
            buffer_load_dword v5, v2, {ws}, 0 offen sc1
            s_waitcnt vmcnt(0)
            s_memtime s[34:35]
            s_waitcnt lgkmcnt(0)
            s_sub_u32 s34, s34, s32
            s_add_u32 s{30+c}, s{30+c}, s34''')
    A(f'''s_cmp_lt_u32 s31, s30
    s_cselect_b32 s26, 1, 0
    s_lshr_b32 s29, s29, 2             ; side
    s_xor_b32 s26, s26, s29
    v_mov_b32 v4, s26
    v_mov_b32 v2, {PAR_OFF}
    buffer_store_dword v4, v2, {ws}, 0 offen
    s_waitcnt vmcnt(0)''')
    A(f'{P}_end:')
    A('s_endpgm')
    return kernel_text(name, A.text(), 224, 48, 64)
```

```python
from common import *
import struct, math
def f2u(x): return struct.unpack('<I', struct.pack('<f', x))[0]
LOG2E = 1.4426950408889634
INV2PI = 0.15915494309189535

WREG = 20480
PRM, KQ, RB, UB = 0, 4096, 7168, 15696
R1OFF = (1056 + 17) * 4
SSM_LDS = 4 * WREG
OUTL = 0

S_WS = 4
S_WAVE, S_D0, S_REG, S_T0, S_T1 = 8, 9, 10, 11, 12

def ssm_task(A, wg_sreg):
    A(f'''s_load_dwordx2 s[16:17], s[0:1], {KA['A_re']}
    s_load_dwordx2 s[18:19], s[0:1], {KA['A_im']}
    s_load_dwordx2 s[20:21], s[0:1], {KA['B_re']}
    s_load_dwordx2 s[22:23], s[0:1], {KA['B_im']}
    s_load_dwordx2 s[24:25], s[0:1], {KA['C_re']}
    s_load_dwordx2 s[26:27], s[0:1], {KA['C_im']}
    s_load_dwordx2 s[28:29], s[0:1], {KA['log_dt']}
    s_load_dwordx2 s[30:31], s[0:1], {KA['Dskip']}
    s_load_dwordx2 s[32:33], s[0:1], {KA['u']}
    s_load_dwordx2 s[34:35], s[0:1], {KA['out']}
    s_lshl_b32 s{S_D0}, s{wg_sreg}, 2
    s_mul_i32 s{S_REG}, s{S_WAVE}, {WREG}
    s_waitcnt lgkmcnt(0)''')
    srd(A, 36, 32, 33, 2048 * 1280)
    A(f'''v_mul_u32_u24 v2, 1280, v0
    s_lshl_b32 s{S_T0}, s{S_D0}, 1
    v_add_u32 v2, s{S_T0}, v2''')
    for it in range(8):
        A(f's_mov_b32 s{S_T1}, {it*256*1280}')
        A(f'buffer_load_dwordx2 v[{100+2*it}:{101+2*it}], v2, s[36:39], s{S_T1} offen')
    A(f'''s_add_u32 s{S_T0}, s{S_D0}, s{S_WAVE}      ; d
    s_lshl_b32 s{S_T1}, s{S_T0}, 8
    v_lshlrev_b32 v3, 1, v1
    v_add_u32 v3, s{S_T1}, v3''')
    for i, sp in enumerate((16, 18, 20, 22, 24, 26)):
        srd(A, 40, sp, sp + 1, 640 * 256)
        A(f'buffer_load_ushort v{10+2*i}, v3, s[40:43], 0 offen')
        A(f'buffer_load_ushort v{11+2*i}, v3, s[40:43], 0 offen offset:128')
    srd(A, 40, 28, 29, 1280)
    A(f'''s_lshl_b32 s{S_T1}, s{S_T0}, 1
    v_mov_b32 v4, s{S_T1}
    buffer_load_ushort v22, v4, s[40:43], 0 offen''')
    srd(A, 40, 30, 31, 1280)
    A(f'''s_lshl_b32 s{S_T1}, s{S_D0}, 1
    v_mov_b32 v4, s{S_T1}
    buffer_load_dwordx2 v[116:117], v4, s[40:43], 0 offen
    s_waitcnt vmcnt(0)''')
    A(f'''v_lshlrev_b32 v22, 16, v22
    v_mul_f32 v22, {hex(f2u(LOG2E))}, v22
    v_exp_f32 v22, v22
    s_nop 0
    v_cvt_pk_bf16_f32 v22, v22, v22
    v_lshlrev_b32 v22, 16, v22''')
    for r in range(10, 22):
        A(f'v_lshlrev_b32 v{r}, 16, v{r}')
    A(f'v_lshlrev_b32 v5, 5, v1')
    A(f'v_add_u32 v5, s{S_REG}, v5')
    for h in range(2):
        A(f'''v_mul_f32 v24, v22, v{10+h}
        v_mul_f32 v24, {hex(f2u(LOG2E))}, v24       ; zr'
        v_mul_f32 v25, v22, v{12+h}
        v_mul_f32 v25, {hex(f2u(INV2PI))}, v25      ; zi'
        v_mul_f32 v30, v22, v{14+h}                 ; dBr
        v_mul_f32 v31, v22, v{16+h}                 ; dBi
        v_mul_f32 v26, v{18+h}, v30
        v_fma_f32 v26, -v{20+h}, v31, v26           ; cr
        v_mul_f32 v32, v{18+h}, v31
        v_fma_f32 v32, v{20+h}, v30, v32            ; ci
        v_sub_f32 v27, 0, v32                       ; -ci
        ds_write_b128 v5, v[24:27] offset:{PRM + h*2048}
        v_mov_b32 v28, v24
        v_mov_b32 v29, v25
        v_sub_f32 v31, 0, v26                       ; -cr
        v_mov_b32 v30, v27                          ; -ci
        ds_write_b128 v5, v[28:31] offset:{PRM + h*2048 + 16}''')
    A(f'''v_lshrrev_b32 v6, 6, v0                  ; (t>>6)
    v_and_b32 v7, 63, v0
    v_lshlrev_b32 v7, 1, v7
    v_mul_u32_u24 v6, 144, v6
    v_add_u32 v6, v6, v7                            ; block(t>>6)*144 + b*2
    v_add_u32 v6, {UB + 144}, v6
    v_add_u32 v8, 0x8000, v6''')
    for it in range(8):
        off = it * 4 * 144
        for ch in range(4):
            reg = 100 + 2 * it + (ch >> 1)
            ins = 'ds_write_b16_d16_hi' if ch & 1 else 'ds_write_b16'
            A(f'{ins} v6, v{reg} offset:{ch*WREG + off}' if ch * WREG + off < 65536 else f'{ins} v8, v{reg} offset:{ch*WREG + off - 32768}')
        if it == 0:
            pass
    A(f'''v_lshlrev_b32 v9, 2, v1
    v_add_u32 v9, s{S_REG}, v9
    v_mov_b32 v24, 0
    v_cmp_gt_u32 vcc, 36, v1
    s_and_saveexec_b64 s[44:45], vcc
    ds_write_b32 v9, v24 offset:{UB}
    s_mov_b64 exec, s[44:45]
    s_waitcnt lgkmcnt(0)
    s_barrier''')
    A(f'''v_and_b32 v6, 15, v1                     ; i / j
    v_lshrrev_b32 v7, 4, v1
    v_cvt_f32_u32 v8, v6
    v_lshlrev_b32 v9, 4, v7
    v_add_u32 v9, s{S_REG}, v9
    v_and_b32 v10, 1, v7
    v_cvt_f32_u32 v10, v10
    v_mul_f32 v10, 0xbe800000, v10''')
    A(f'''v_lshlrev_b32 v11, 6, v7
    v_add_u32 v11, v11, v6
    v_lshlrev_b32 v11, 2, v11
    v_add_u32 v11, s{S_REG}, v11''')
    for r in range(4):
        sig = 1 << r
        if r == 0:
            A('v_mul_f32 v12, 0x41800000, v8')
        else:
            A(f'v_mul_f32 v12, {hex(f2u(16.0*sig))}, v8')
            A(f'v_add_f32 v12, {hex(f2u(128.0*sig))}, v12')
        A(f'v_mul_f32 v13, {hex(f2u(float(sig)))}, v8')
        NPF = 4
        for m in range(NPF):
            A(f'ds_read_b128 v[{40+4*m}:{43+4*m}], v9 offset:{PRM + m*64}')
        lp = A.lab('kg')
        A(f's_mov_b32 s{S_T0}, 0')
        A(f'v_mov_b32 v14, v9')
        for rr in range(4):
            A(f'v_mov_b32 v{60+rr}, 0')
        A(f'{lp}:')
        for m in range(4):
            p = 40 + 4 * m
            A(f's_waitcnt lgkmcnt(3)')
            A(f'''v_mul_f32 v20, v{p}, v12
            v_mul_f32 v21, v{p+1}, v12
            v_mul_f32 v22, v{p}, v13
            v_fma_f32 v23, v{p+1}, v13, v10
            v_exp_f32 v20, v20
            v_fract_f32 v21, v21
            v_exp_f32 v22, v22
            v_fract_f32 v23, v23
            v_sin_f32 v24, v21
            v_cos_f32 v21, v21
            v_cos_f32 v23, v23
            v_mul_f32 v24, v{p+3}, v24
            v_fma_f32 v24, v{p+2}, v21, v24
            v_mul_f32 v{26+2*(m%2)}, v20, v24
            v_mul_f32 v{27+2*(m%2)}, v22, v23
            ds_read_b128 v[{p}:{p+3}], v14 offset:{PRM + (m+4)*64}
            s_nop 0
            v_mfma_f32_16x16x4_f32 v[60:63], v{26+2*(m%2)}, v{27+2*(m%2)}, v[60:63]''')
        A(f'''v_add_u32 v14, 256, v14
        s_add_u32 s{S_T0}, s{S_T0}, 4
        s_cmp_lt_u32 s{S_T0}, 64
        s_cbranch_scc1 {lp}
        s_waitcnt lgkmcnt(0)''')
        A.nop(12)
        base = 0 if r == 0 else 256 + (r - 1) * 128
        for rr in range(4):
            A(f'ds_write_b32 v11, v{60+rr} offset:{KQ + (base + rr*16)*4}')
    A('s_waitcnt lgkmcnt(0)')
    A(f'''s_mov_b32 s{S_T0}, 17024
    v_lshlrev_b32 v9, 2, v1
    v_add_u32 v9, s{S_REG}, v9''')
    for it in range(17):
        A(f'''v_lshlrev_b32 v10, 1, v1
        v_sub_u32 v10, {2048 - 128*it}, v10''')
        for q in range(3):
            j = 12 + q
            A(f'''v_subrev_u32 v{j}, {q}, v10
            v_cvt_f32_i32 v16, v{j}
            v_cvt_pk_bf16_f32 v16, v16, v16
            v_and_b32 v16, 0xffff, v16
            v_subrev_u32 v16, s{S_T0}, v16
            v_cmp_gt_i32 vcc, 256, v{j}
            s_nop 1
            v_cndmask_b32 v16, v16, v{j}, vcc
            v_max_i32 v16, 0, v16
            v_min_i32 v16, 767, v16
            v_lshlrev_b32 v16, 2, v16
            v_add_u32 v16, s{S_REG}, v16
            ds_read_b32 v{20+q}, v16 offset:{KQ}
            v_cmp_gt_u32 s[{44+2*q}:{45+2*q}], {2048}, v{j}''' if False else
            f'''v_subrev_u32 v{j}, {q}, v10
            v_cvt_f32_i32 v16, v{j}
            v_cvt_pk_bf16_f32 v16, v16, v16
            v_and_b32 v16, 0xffff, v16
            v_subrev_u32 v16, s{S_T0}, v16
            v_cmp_gt_i32 vcc, 0x100, v{j}
            s_nop 1
            v_cndmask_b32 v16, v16, v{j}, vcc
            v_max_i32 v16, 0, v16
            v_min_i32 v16, 0x2ff, v16
            v_lshlrev_b32 v16, 2, v16
            v_add_u32 v16, s{S_REG}, v16
            ds_read_b32 v{20+q}, v16 offset:{KQ}''')
        A('s_waitcnt lgkmcnt(0)')
        for q in range(3):
            j = 12 + q
            A(f'''v_cmp_gt_u32 vcc, 0x800, v{j}
            s_nop 1
            v_cndmask_b32 v{20+q}, 0, v{20+q}, vcc''')
        A(f'''v_cvt_pk_bf16_f32 v24, v20, v21
        v_cvt_pk_bf16_f32 v25, v21, v22''')
        if it == 16:
            A(f'''v_cmp_gt_u32 vcc, 32, v1
            s_and_saveexec_b64 s[44:45], vcc''')
        A(f'''ds_write_b32 v9, v24 offset:{RB + it*256}
        ds_write_b32 v9, v25 offset:{RB + R1OFF + it*256}''')
        if it == 16:
            A('s_mov_b64 exec, s[44:45]')
    A('s_waitcnt lgkmcnt(0)')
    A(f'''v_and_b32 v6, 31, v1
    v_lshrrev_b32 v7, 5, v1
    v_add_u32 v8, 1, v6
    v_lshrrev_b32 v8, 1, v8                        ; (m+1)>>1
    v_lshlrev_b32 v9, 2, v7
    v_sub_u32 v9, v9, v8
    v_add_u32 v9, {1024 - 16}, v9                  ; Y0 - 16  (k'=0: Y0 - 8*2)
    v_lshlrev_b32 v9, 2, v9
    v_and_b32 v8, 1, v6
    v_mul_u32_u24 v8, {R1OFF}, v8
    v_add3_u32 v9, v9, v8, s{S_REG}
    v_add_u32 v9, {RB}, v9
    v_lshlrev_b32 v10, 4, v7                       ; hi*16
    v_add_u32 v10, s{S_REG}, v10
    v_add_u32 v10, {UB}, v10''')
    VF = 24
    VB = 48
    VA0, VA1 = 120, 136
    def slot(j): return VF + ((j + 3) % 6) * 4
    def loadF(j, kp):
        delta = j - 4 * kp
        o = (2 - delta) * 8
        A(f'ds_read2_b32 v[{slot(j)}:{slot(j)+1}], v9 offset0:{o} offset1:{o+1}')
        A(f'ds_read2_b32 v[{slot(j)+2}:{slot(j)+3}], v9 offset0:{o+2} offset1:{o+3}')
    def addrB(kp):
        A(f'''v_subrev_u32 v12, {kp}, v6
        v_max_i32 v12, -1, v12
        v_add_u32 v12, 1, v12
        v_mul_u32_u24 v12, 144, v12
        v_add_u32 v11, v10, v12''')
    loadF(-3, 0); loadF(-2, 0)
    for kp in range(32):
        bb = VB + (kp % 2) * 16
        addrB(kp)
        for c in range(4):
            A(f'ds_read_b128 {v(bb + c*4, 4)}, v11 offset:{c*32}')
        for j in range(4 * kp - 1, 4 * kp + 3):
            loadF(j, kp)
        A('s_waitcnt lgkmcnt(0)')
        for c in range(4):
            b = v(bb + c * 4, 4)
            first = (kp == 0 and c == 0)
            A(f'v_mfma_f32_32x32x16_bf16 {v(VA0,16)}, {v(slot(4*kp - c),4)}, {b}, {"0" if first else v(VA0,16)}')
            A(f'v_mfma_f32_32x32x16_bf16 {v(VA1,16)}, {v(slot(4*kp + 2 - c),4)}, {b}, {"0" if first else v(VA1,16)}')
        A(f'v_subrev_u32 v9, 128, v9')
    A.nop(16)
    A('s_barrier')
    A(f'''v_mul_u32_u24 v8, 520, v6
    v_lshlrev_b32 v11, 5, v7                       ; 4hi*8
    s_lshl_b32 s{S_T0}, s{S_WAVE}, 1
    v_add3_u32 v8, v8, v11, s{S_T0}''')
    for r, acc in enumerate((VA0, VA1)):
        for q in range(4):
            for e in range(0, 4, 2):
                reg = acc + q * 4 + e
                A(f'v_cvt_pk_bf16_f32 v12, v{reg}, v{reg+1}')
                tok = 32 * r + 8 * q + e
                A(f'ds_write_b16 v8, v12 offset:{OUTL + tok*8}')
                A(f'ds_write_b16_d16_hi v8, v12 offset:{OUTL + (tok+1)*8}')
    A('s_waitcnt lgkmcnt(0)')
    A('s_barrier')
    srd(A, 36, 34, 35, 2048 * 2560)
    A(f'''v_lshlrev_b32 v8, 3, v0
    v_lshrrev_b32 v11, 6, v0
    v_lshlrev_b32 v11, 3, v11
    v_add_u32 v8, v8, v11
    v_mul_u32_u24 v9, 2560, v0
    s_lshl_b32 s{S_T0}, s{S_D0}, 1
    v_add_u32 v9, s{S_T0}, v9
    v_lshlrev_b32 v20, 16, v116
    v_and_b32 v21, 0xffff0000, v116
    v_lshlrev_b32 v22, 16, v117
    v_and_b32 v23, 0xffff0000, v117''')
    for it in range(8):
        A(f'ds_read_b64 v[{24+2*it}:{25+2*it}], v8 offset:{OUTL + it*(2048+32)}')
    A('s_waitcnt lgkmcnt(0)')
    for it in range(8):
        for half in range(2):
            ur = 100 + 2 * it + half; yr = 24 + 2 * it + half
            A(f'''v_lshlrev_b32 v12, 16, v{ur}
            v_and_b32 v13, 0xffff0000, v{ur}
            v_mul_f32 v12, v12, v{20+2*half}
            v_mul_f32 v13, v13, v{21+2*half}
            v_cvt_pk_bf16_f32 v12, v12, v13
            v_lshlrev_b32 v14, 16, v12
            v_and_b32 v15, 0xffff0000, v12
            v_lshlrev_b32 v16, 16, v{yr}
            v_and_b32 v17, 0xffff0000, v{yr}
            v_add_f32 v14, v14, v16
            v_add_f32 v15, v15, v17
            v_cvt_pk_bf16_f32 v{yr}, v14, v15''')
        A(f's_mov_b32 s{S_T1}, {it*256*2560}')
        A(f'buffer_store_dwordx2 v[{24+2*it}:{25+2*it}], v9, s[36:39], s{S_T1} offen')
    A('s_barrier')

def gen_ssm(cfg, name='ssm_kernel'):
    P = 'SS'
    A = Asm(P)
    A(f'''s_cmp_ge_u32 s2, 160
    s_cbranch_scc1 {P}_end
    v_lshrrev_b32 v2, 6, v0
    v_and_b32 v1, 63, v0
    s_nop 0
    v_readfirstlane_b32 s{S_WAVE}, v2
    s_mov_b32 s13, s2''')
    ssm_task(A, 13)
    A(f'{P}_end:')
    A('s_endpgm')
    return kernel_text(name, A.text(), 160, 56, 160)
```

```python
import sys
sys.path.insert(0,'gen')
from common import *
import chain, qkv, attn, ssm

MAIN = 'concat_heads__ssm_conv_s4__memory_aug_recurrent_mem_tr__prompt_kernel'
TASKCTR = CNT_OFF + 128
TASK_LDS = 143296

def workers(A, P):
    top = A.lab('wtop'); nw = A.lab('wnw'); lw = A.lab('wwof')
    A('s_mov_b32 s8, s14')
    A(f'{top}:')
    A(f'''s_cmp_lg_u32 s8, 0
    s_cbranch_scc1 {nw}
    s_mov_b64 exec, 1
    v_mov_b32 v2, {TASKCTR}
    v_mov_b32 v3, 1
    buffer_atomic_add v3, v2, s[4:7], 0 offen sc0
    s_waitcnt vmcnt(0)
    v_mov_b32 v2, {TASK_LDS}
    ds_write_b32 v2, v3
    s_waitcnt lgkmcnt(0)
    s_mov_b64 exec, -1
    {nw}:
    s_barrier
    v_mov_b32 v2, {TASK_LDS}
    ds_read_b32 v3, v2
    s_waitcnt lgkmcnt(0)
    s_nop 0
    v_readfirstlane_b32 s13, v3
    s_nop 3
    s_barrier
    s_cmp_ge_u32 s13, 288
    s_cbranch_scc1 {P}_end
    s_cmp_ge_u32 s13, 160
    s_cbranch_scc1 {lw}''')
    ssm.ssm_task(A, 13)
    A(f's_branch {top}')
    A(f'{lw}:')
    A('s_sub_u32 s9, s13, 160')
    attn.gen_wof_body(A, 9, P)
    A(f's_branch {top}')

def build(cfg):
    hdr = open('concat_heads__ssm_conv_s4__memory_aug_recurrent_mem_tr__prompt.s.ref').read().split('\n')
    head = []
    for l in hdr:
        if l.startswith('; @launch'):
            break
        head.append(l)
    launches = [
        ('qkv_kernel', 256, 512, 98304),
        (MAIN, 256, 256, 143360),
        ('attn_kernel', 512, 256, 0),
        ('outp_kernel', 256, 256, 81920),
    ]
    t = '\n'.join(head) + '\n'
    for n, g, b, l in launches:
        t += f'; @launch kernel={n} grid=({g},1,1) block=({b},1,1) lds={l}\n'
    t += '.amdgcn_target "amdgcn-amd-amdhsa--gfx950"\n'
    ccfg = dict(cfg.get('chain', {})); ccfg['workers'] = workers
    t += qkv.gen_qkv({}, name='qkv_kernel')
    t += chain.gen_chain(ccfg, name=MAIN)
    t += attn.gen_attn({}, name='attn_kernel')
    t += attn.gen_outp({}, name='outp_kernel')
    return t

if __name__ == '__main__':
    out = sys.argv[1] if len(sys.argv) > 1 else 'concat_heads__ssm_conv_s4__memory_aug_recurrent_mem_tr__prompt.s'
    t = build({'chain': {'e1_sleep': 2, 'e2_sleep': 2}})
    open(out, 'w').write(t)
    print('written', out, len(t))
```

```python
from common import *
import struct

def mfma32(A, d, x, y, c):
    A(f'v_mfma_f32_16x16x32_bf16 {d}, {x}, {y}, {c}')
def mfma16(A, d, x, y, c):
    A(f'v_mfma_f32_16x16x16_bf16 {d}, {x}, {y}, {c}')

S_WS = 4
S_WAVE, S_SEG, S_H, S_B, S_C, S_T = 8, 9, 10, 11, 12, 13
M_L32 = 14
V_L16 = 2
V_HVO = 3
V_ST = 4
V_HFO = 5
V_Q, V_K, V_V, V_HF, V_HV = 16, 48, 80, 112, 128
V_SEL = 144
V_ONE = 152
V_CM = 156
V_DM = 160
V_T = 164
V_PX = 176
V_PM = 184
V_DEN = 188
V_CFX = 196
V_CFM = 228
V_O = 48
V_TMP = 244

def wait_flags(A, setup, nl, thr_setup, abort=None):
    lp = A.lab('wf'); ok = A.lab('wfok')
    A(setup)
    A(thr_setup)
    A(f'''s_mov_b64 exec, {(1 << nl) - 1}
    s_mov_b32 s40, 0
    {lp}:
    buffer_load_dword v9, v2, s[4:7], 0 offen sc1
    s_waitcnt vmcnt(0)
    v_cmp_lt_u32 vcc, v9, v3
    s_cbranch_vccz {ok}
    s_sleep 16
    s_add_u32 s40, s40, 1
    s_cmp_lt_u32 s40, {1 << 20}
    s_cbranch_scc1 {lp}
    {ok}:
    s_mov_b64 exec, -1''')

def signal(A, addr_sreg, wave_sreg=8):
    l = A.lab('sig')
    A(f'''s_cmp_lg_u32 s{wave_sreg}, 0
    s_cbranch_scc1 {l}
    v_mov_b32 v2, s{addr_sreg}
    v_mov_b32 v3, 1
    s_mov_b64 exec, 1
    buffer_atomic_add v3, v2, s[4:7], 0 offen sc1
    s_mov_b64 exec, -1
    {l}:''')

def attn_task(A, sc1=False):
    ws = f's[{S_WS}:{S_WS+3}]'
    A(f'''s_lshl_b32 s{S_B}, s{S_H}, 6
    s_add_u32 s{S_B}, s{S_B}, s{S_SEG}
    s_lshl_b32 s{S_B}, s{S_B}, 13
    s_add_u32 s16, s{S_B}, {QX_OFF}
    s_add_u32 s17, s16, 4096
    s_add_u32 s18, s{S_B}, {KX_OFF}
    s_add_u32 s19, s18, 4096
    s_add_u32 s20, s{S_B}, {VX_OFF}
    s_add_u32 s21, s20, 4096
    s_lshl_b32 s22, s{S_SEG}, 5
    s_add_u32 s22, s22, s{S_H}            ; seg*32+h
    s_lshl_b32 s23, s22, 12
    s_add_u32 s23, s23, {HF_OFF}
    s_lshl_b32 s24, s22, 11
    s_add_u32 s24, s24, {HV_OFF}
    s_add_u32 s25, s{S_B}, {OX_OFF}''')
    for kt in range(2):
        for ks in range(4):
            A(f'buffer_load_dwordx4 {v(V_Q+(kt*4+ks)*4,4)}, v{V_L16}, {ws}, s{16+kt} offen offset:{ks*1024}')
    for ks in range(4):
        A(f'buffer_load_dwordx4 {v(V_HF+ks*4,4)}, v{V_HFO}, {ws}, s23 offen offset:{ks*1024}')
    for kt in range(2):
        for ks in range(4):
            A(f'buffer_load_dwordx4 {v(V_K+(kt*4+ks)*4,4)}, v{V_L16}, {ws}, s{18+kt} offen offset:{ks*1024}')
    for kt in range(2):
        for ks in range(4):
            A(f'buffer_load_dwordx4 {v(V_V+(kt*4+ks)*4,4)}, v{V_L16}, {ws}, s{20+kt} offen offset:{ks*1024}')
    for ks in range(4):
        A(f'buffer_load_dwordx4 {v(V_HV+ks*4,4)}, v{V_HVO}, {ws}, s24 offen offset:{ks*512}')
    A('s_waitcnt vmcnt(12)')
    for qt in range(2):
        Tm, T0, T1 = V_T, V_T + 4, V_T + 8
        for ks in range(4):
            q = v(V_Q + (qt * 4 + ks) * 4, 4)
            mfma32(A, v(Tm, 4), v(V_HF + ks * 4, 4), q, v(V_CM, 4) if ks == 0 else v(Tm, 4))
            mfma32(A, v(T0, 4), v(V_K + ks * 4, 4), q, (v(V_DM, 4) if qt == 0 else '0') if ks == 0 else v(T0, 4))
            if qt == 1:
                mfma32(A, v(T1, 4), v(V_K + (4 + ks) * 4, 4), q, v(V_DM, 4) if ks == 0 else v(T1, 4))
        A.nop(8)
        regs = list(range(Tm, Tm + 8)) + (list(range(T1, T1 + 4)) if qt == 1 else [])
        t = V_TMP
        A(f'v_max3_f32 v{t}, v{regs[0]}, v{regs[1]}, v{regs[2]}')
        rest = regs[3:]
        while rest:
            if len(rest) >= 2:
                A(f'v_max3_f32 v{t}, v{t}, v{rest[0]}, v{rest[1]}'); rest = rest[2:]
            else:
                A(f'v_max_f32 v{t}, v{t}, v{rest[0]}'); rest = rest[1:]
        A(f'''v_mov_b32 v{t+1}, v{t}
        s_nop 1
        v_permlane16_swap_b32 v{t}, v{t+1}
        v_max_f32 v{t}, v{t}, v{t+1}
        v_mov_b32 v{t+1}, v{t}
        s_nop 1
        v_permlane32_swap_b32 v{t}, v{t+1}
        v_max_f32 v{t}, v{t}, v{t+1}
        v_mul_f32 v{t}, s{S_C}, v{t}''')
        for r in regs:
            A(f'v_fma_f32 v{r}, v{r}, s{S_C}, -v{t}')
        for r in regs:
            A(f'v_exp_f32 v{r}, v{r}')
        A('s_nop 0')
        px = V_PX + qt * 4; pm = V_PM + qt * 2
        A(f'v_cvt_pk_bf16_f32 v{px}, v{T0}, v{T0+1}')
        A(f'v_cvt_pk_bf16_f32 v{px+1}, v{T0+2}, v{T0+3}')
        if qt == 1:
            A(f'v_cvt_pk_bf16_f32 v{px+2}, v{T1}, v{T1+1}')
            A(f'v_cvt_pk_bf16_f32 v{px+3}, v{T1+2}, v{T1+3}')
        else:
            A(f'v_mov_b32 v{px+2}, 0')
            A(f'v_mov_b32 v{px+3}, 0')
        A(f'v_cvt_pk_bf16_f32 v{pm}, v{Tm}, v{Tm+1}')
        A(f'v_cvt_pk_bf16_f32 v{pm+1}, v{Tm+2}, v{Tm+3}')
        A.nop(2)
        mfma32(A, v(V_DEN + qt * 4, 4), v(V_ONE, 4), v(px, 4), '0')
    A.nop(8)
    for qt in range(2):
        mfma16(A, v(V_DEN + qt * 4, 4), v(V_ONE, 2), v(V_PM + qt * 2, 2), v(V_DEN + qt * 4, 4))
    A('s_waitcnt vmcnt(0)')
    TA = V_Q
    for et2 in range(0, 8, 2):
        for j in range(2):
            et = et2 + j; ks = et >> 1; half = et & 1
            base = TA + ((et2 // 2) % 2) * 24 + j * 12 if False else TA + (j * 12) + ((et2 // 2) % 2) * 0
            mfma32(A, v(TA + j * 12, 4), v(V_V + ks * 4, 4), v(V_SEL + half * 4, 4), '0')
            mfma32(A, v(TA + j * 12 + 4, 4), v(V_V + (4 + ks) * 4, 4), v(V_SEL + half * 4, 4), '0')
            mfma32(A, v(TA + j * 12 + 8, 4), v(V_HV + ks * 4, 4), v(V_SEL + half * 4, 4), '0')
        A.nop(8)
        for j in range(2):
            et = et2 + j; b = TA + j * 12
            A(f'v_cvt_pk_bf16_f32 v{V_CFX+et*4}, v{b}, v{b+1}')
            A(f'v_cvt_pk_bf16_f32 v{V_CFX+et*4+1}, v{b+2}, v{b+3}')
            A(f'v_cvt_pk_bf16_f32 v{V_CFX+et*4+2}, v{b+4}, v{b+5}')
            A(f'v_cvt_pk_bf16_f32 v{V_CFX+et*4+3}, v{b+6}, v{b+7}')
            A(f'v_cvt_pk_bf16_f32 v{V_CFM+et*2}, v{b+8}, v{b+9}')
            A(f'v_cvt_pk_bf16_f32 v{V_CFM+et*2+1}, v{b+10}, v{b+11}')
        A.nop(3)
    for qt in range(2):
        for et in range(8):
            mfma32(A, v(V_O + et * 4, 4), v(V_CFX + et * 4, 4), v(V_PX + qt * 4, 4), '0')
        for et in range(8):
            mfma16(A, v(V_O + et * 4, 4), v(V_CFM + et * 2, 2), v(V_PM + qt * 2, 2), v(V_O + et * 4, 4))
        A(f'v_rcp_f32 v{V_TMP}, v{V_DEN + qt*4}')
        A.nop(8)
        for et in range(8):
            b = V_O + et * 4
            for r in range(4):
                A(f'v_mul_f32 v{b+r}, v{V_TMP}, v{b+r}')
            A(f'v_cvt_pk_bf16_f32 v{V_TMP+2+(et%2)*2}, v{b}, v{b+1}')
            A(f'v_cvt_pk_bf16_f32 v{V_TMP+3+(et%2)*2}, v{b+2}, v{b+3}')
            off = (et >> 1) * 1024 + (et & 1) * 512
            so = 's25' if qt == 0 else 's26'
            A(f'buffer_store_dwordx2 v[{V_TMP+2+(et%2)*2}:{V_TMP+3+(et%2)*2}], v{V_ST}, {ws}, {so} offen offset:{off}' + (' sc1' if sc1 else ''))
        if qt == 0:
            A('s_add_u32 s26, s25, 4096')
            A.nop(4)

def attn_consts(A):
    A(f'''v_lshlrev_b32 v{V_L16}, 4, v1
    v_and_b32 v6, 15, v1
    v_lshrrev_b32 v7, 4, v1
    v_and_b32 v8, 7, v1
    v_lshlrev_b32 v9, 7, v7
    v_lshlrev_b32 v8, 4, v8
    v_add_u32 v{V_HVO}, v9, v8
    v_lshlrev_b32 v9, 8, v7
    v_add3_u32 v{V_HFO}, v9, v8, 64
    v_add_u32 v{V_HFO}, 64, v{V_HFO}
    v_lshrrev_b32 v9, 1, v7
    v_lshlrev_b32 v9, 8, v9
    v_lshlrev_b32 v10, 4, v6
    v_and_b32 v11, 1, v7
    v_lshlrev_b32 v11, 3, v11
    v_add3_u32 v{V_ST}, v9, v10, v11
    v_cmp_gt_u32 vcc, 32, v1
    s_mov_b64 s[{M_L32}:{M_L32+1}], vcc
    v_mov_b32 v9, 0xff800000
    v_mov_b32 v10, 0
    v_cndmask_b32 v{V_CM}, v10, v9, s[{M_L32}:{M_L32+1}]
    v_mov_b32 v{V_CM+1}, v{V_CM}
    v_mov_b32 v{V_CM+2}, v{V_CM}
    v_mov_b32 v{V_CM+3}, v{V_CM}
    v_lshlrev_b32 v11, 2, v7''')
    for r in range(4):
        A(f'''v_add_u32 v12, {r}, v11
        v_cmp_le_u32 vcc, v12, v6
        s_nop 1
        v_cndmask_b32 v{V_DM+r}, v9, v10, vcc''')
    for r in range(4):
        A(f'v_mov_b32 v{V_ONE+r}, 0x3f803f80')
    A(f'''v_and_b32 v9, 1, v6
    v_lshlrev_b32 v9, 4, v9
    v_mov_b32 v10, 0x3f80
    v_lshlrev_b32 v10, v9, v10
    v_and_b32 v9, 7, v6
    v_lshrrev_b32 v9, 1, v9
    v_lshrrev_b32 v11, 3, v6            ; e'>>3''')
    for half in range(2):
        A(f'''v_add_u32 v12, {2*half}, v11
        v_cmp_eq_u32 s[26:27], v12, v7''')
        for r in range(4):
            A(f'''v_cmp_eq_u32 vcc, {r}, v9
            s_and_b64 vcc, vcc, s[26:27]
            s_nop 1
            v_cndmask_b32 v{V_SEL+half*4+r}, 0, v10, vcc''')
    c = struct.unpack('<I', struct.pack('<f', 128 ** -0.5 * 1.4426950408889634))[0]
    A(f's_mov_b32 s{S_C}, {hex(c)}')

def gen_attn(cfg, name='attn_kernel'):
    P = 'AT'
    A = Asm(P)
    A(f'''s_cmp_ge_u32 s2, 512
    s_cbranch_scc1 {P}_end
    s_load_dwordx2 s[26:27], s[0:1], {KA['ws']}
    v_lshrrev_b32 v2, 6, v0
    v_and_b32 v1, 63, v0
    s_nop 0
    v_readfirstlane_b32 s{S_WAVE}, v2
    s_waitcnt lgkmcnt(0)''')
    srd(A, S_WS, 26, 27, WS_BYTES)
    attn_consts(A)
    A(f'''s_lshr_b32 s{S_SEG}, s2, 3
    s_and_b32 s{S_H}, s2, 7
    s_lshl_b32 s{S_H}, s{S_H}, 2
    s_add_u32 s{S_H}, s{S_H}, s{S_WAVE}''')
    attn_task(A)
    A(f'{P}_end:')
    A('s_endpgm')
    return kernel_text(name, A.text(), 256, 48, 256)

def gen_wof_body(A, kk_sreg, P, sc1=False):
    ws = f's[{S_WS}:{S_WS+3}]'
    A(f's_load_dwordx2 s[26:27], s[0:1], {KA["Wo"]}')
    A('s_waitcnt lgkmcnt(0)')
    srd(A, 16, 26, 27, 4096 * 1280)
    A(f'''s_mul_i32 s20, s{kk_sreg}, 40960
    v_lshlrev_b32 v2, 4, v0
    s_lshl_b32 s21, s{S_WAVE}, 10''')
    for r in range(10):
        A(f'''s_add_u32 m0, s21, {r*4096}
        s_add_u32 s22, s20, {r*4096}
        s_nop 0
        buffer_load_dwordx4 v2, s[16:19], s22 offen lds''')
    A('s_waitcnt vmcnt(0)')
    A('s_barrier')
    A(f'''v_and_b32 v3, 15, v1
    v_lshrrev_b32 v3, 2, v3
    v_lshrrev_b32 v4, 4, v1
    v_lshlrev_b32 v4, 3, v4
    v_add_u32 v3, v3, v4
    v_mul_u32_u24 v3, 1280, v3
    v_and_b32 v4, 3, v1
    v_lshlrev_b32 v4, 3, v4
    s_mul_i32 s21, s{S_WAVE}, 320
    v_add3_u32 v3, v3, v4, s21
    v_lshlrev_b32 v5, 4, v1
    s_mul_i32 s22, s{S_WAVE}, {10*128*1024}
    s_lshl_b32 s23, s{kk_sreg}, 10
    s_add_u32 s22, s22, s23
    s_add_u32 s22, s22, {WOF_OFF}''')
    for dt in range(10):
        A(f'ds_read_b64_tr_b16 v[{8+dt*4}:{9+dt*4}], v3 offset:{dt*32}')
        A(f'ds_read_b64_tr_b16 v[{10+dt*4}:{11+dt*4}], v3 offset:{dt*32 + 4*1280}')
    A('s_waitcnt lgkmcnt(0)')
    for dt in range(10):
        A(f'buffer_store_dwordx4 v[{8+dt*4}:{11+dt*4}], v5, {ws}, s22 offen' + (' sc1' if sc1 else ''))
        A(f's_add_u32 s22, s22, {128*1024}')
    if sc1: A('s_waitcnt vmcnt(0)')
    A('s_barrier')

def gen_wof(cfg, name='wof_kernel'):
    P = 'WF'
    A = Asm(P)
    A(f'''s_cmp_ge_u32 s2, 128
    s_cbranch_scc1 {P}_end
    s_load_dwordx2 s[26:27], s[0:1], {KA['ws']}
    v_lshrrev_b32 v2, 6, v0
    v_and_b32 v1, 63, v0
    s_nop 0
    v_readfirstlane_b32 s{S_WAVE}, v2
    s_waitcnt lgkmcnt(0)''')
    srd(A, S_WS, 26, 27, WS_BYTES)
    A('s_mov_b32 s9, s2')
    gen_wof_body(A, 9, P)
    A(f'{P}_end:')
    A('s_endpgm')
    return kernel_text(name, A.text(), 64, 48, 64)

def outp_task(A):
    ws = f's[{S_WS}:{S_WS+3}]'
    V_A, V_B2, V_AC = 16, 56, 96
    A(f'''s_load_dwordx2 s[28:29], s[0:1], {KA['out']}
    s_waitcnt lgkmcnt(0)''')
    srd(A, 20, 28, 29, 2048 * 2560)
    A(f'''v_lshlrev_b32 v2, 4, v1
    s_mul_i32 s11, s10, {5*128*1024}
    s_lshl_b32 s12, s{S_WAVE}, 15
    s_add_u32 s11, s11, s12
    s_add_u32 s11, s11, {WOF_OFF}
    s_lshl_b32 s12, s{S_WAVE}, 22
    s_lshl_b32 s13, s9, 14
    s_add_u32 s12, s12, s13
    s_add_u32 s12, s12, {OX_OFF}''')
    def loads(buf, kkl):
        for j in range(5):
            A(f's_add_u32 s16, s11, {j*128*1024 + kkl*1024}')
            A(f'buffer_load_dwordx4 {v(V_A + buf*20 + j*4, 4)}, v2, {ws}, s16 offen')
        for tt in range(4):
            A(f's_add_u32 s16, s12, {(kkl>>2)*64*8192 + (tt>>1)*8192 + (tt&1)*4096 + (kkl&3)*1024}')
            A(f'buffer_load_dwordx4 {v(V_B2 + buf*16 + tt*4, 4)}, v2, {ws}, s16 offen')
    loads(0, 0)
    for kkl in range(32):
        buf = kkl % 2
        if kkl + 1 < 32:
            loads(1 - buf, kkl + 1)
            A('s_waitcnt vmcnt(9)')
        else:
            A('s_waitcnt vmcnt(0)')
        for j in range(5):
            for tt in range(4):
                d = V_AC + (j * 4 + tt) * 4
                mfma32(A, v(d, 4), v(V_A + buf * 20 + j * 4, 4), v(V_B2 + buf * 16 + tt * 4, 4), '0' if kkl == 0 else v(d, 4))
    A.nop(8)
    A(f'''s_mul_i32 s16, s{S_WAVE}, 20480
    v_add_u32 v3, s16, v2''')
    for t in range(20):
        A(f'ds_write_b128 v3, {v(V_AC + t*4, 4)} offset:{t*1024}')
    A('s_waitcnt lgkmcnt(0)')
    A('s_barrier')
    A(f'''s_mul_i32 s16, s{S_WAVE}, 5120
    v_add_u32 v3, s16, v2
    v_add_u32 v4, 40960, v3''')
    for i in range(5):
        A(f'ds_read_b128 {v(16 + i*16, 4)}, v3 offset:{i*1024}')
        A(f'ds_read_b128 {v(20 + i*16, 4)}, v3 offset:{i*1024 + 20480}')
        A(f'ds_read_b128 {v(24 + i*16, 4)}, v4 offset:{i*1024}')
        A(f'ds_read_b128 {v(28 + i*16, 4)}, v4 offset:{i*1024 + 20480}')
        if i % 2 == 1: A('s_waitcnt lgkmcnt(0)')
    A('s_waitcnt lgkmcnt(0)')
    A(f'''v_and_b32 v5, 15, v1
    v_mul_u32_u24 v5, 2560, v5
    v_lshrrev_b32 v6, 4, v1
    v_lshlrev_b32 v6, 3, v6
    v_add_u32 v5, v5, v6
    s_mul_i32 s15, s9, {64*2560}
    s_mul_i32 s16, s10, 160
    s_add_u32 s15, s15, s16
    s_add_u32 s15, s15, 1280
    s_mul_i32 s17, s{S_WAVE}, 5''')
    for i in range(5):
        b = 16 + i * 16
        for r in range(4):
            A(f'v_add_f32 v{b+r}, v{b+r}, v{b+4+r}')
            A(f'v_add_f32 v{b+8+r}, v{b+8+r}, v{b+12+r}')
        for r in range(4):
            A(f'v_add_f32 v{b+r}, v{b+r}, v{b+8+r}')
        A(f'''v_cvt_pk_bf16_f32 v{b}, v{b}, v{b+1}
        v_cvt_pk_bf16_f32 v{b+1}, v{b+2}, v{b+3}
        s_add_u32 s18, s17, {i}
        s_lshr_b32 s19, s18, 2
        s_and_b32 s18, s18, 3
        s_mul_i32 s18, s18, {16*2560}
        s_lshl_b32 s19, s19, 5
        s_add_u32 s18, s18, s19
        s_add_u32 s18, s18, s15
        buffer_store_dwordx2 v[{b}:{b+1}], v5, s[20:23], s18 offen''')
    A('s_barrier')
```

```python
from common import *

MEML = 0
RED = 10240
ROLE = 17408
HISTL = 18432
STAGE = 20480
CHAIN_LDS = 143360
KXL = 20480
VXL = 20480 + 32768

V_E1LD, V_E1W, V_MEMR, V_FST, V_FVST, V_HF, V_HV, V_FLD, V_FVLD = 10, 11, 12, 13, 14, 15, 16, 17, 18
V_KX0, V_KX1, V_VX0, V_VX1, V_REDW, V_REDR, V_E3ST, V_E3L0, V_E3L1, V_E1ST = 19, 20, 21, 22, 23, 24, 25, 26, 27, 28
V_PF = 29
V_SENT = 30
V_ACC2 = 104
V_PFD = 108
V_L16 = 109
V_HK = 112
V_HVV = 114
V_FLH = 123
V_FLKV = 124
V_HF2 = 121
V_HV2 = 122
V_HIL = 127
V_KLR = 120
V_CINIT = 32
V_ACC = 36
V_E1P = 40
V_E3P = 52
V_E3A = 60
V_E1Q = 56
V_MEMF = 64
V_VPXA = 64
V_VPMA = 88
V_VX = 144
V_F = 176
V_FV = 192
V_VPX = 208
V_VPM = 220
V_TM, V_T0, V_T1 = 226, 230, 234
V_PX, V_PM = 238, 242
V_D = 244
A_WA, A_WV, A_WO, A_KX, A_SEL, A_ONE = 0, 80, 160, 208, 240, 244
S_WS = 4
S_T = 8
S_XCC, S_TK, S_W, S_G, S_TT, S_STEP = 12, 13, 14, 16, 17, 18
S_E1C, S_E1C1, S_E1C2, S_E1N, S_E1CL, S_E2C, S_E2CL, S_E3C, S_E3CL, S_KXN, S_HFO, S_HVO = 20, 21, 22, 23, 24, 25, 26, 27, 28, 29, 38, 39
M_I8, M_L32, M_E1ST, M_RED = 30, 32, 34, 36
S_C = 40
S_TO = 41
S_PAR = 42
S_MODE = 43
S_SENT = 44
S_PFO = 45
S_HB = 46
S_D0, S_D1 = 47, 48
M_L4 = 50
S_KVF = 52
V_KVV = 126
V_H2 = 100
V_HT = 116
M_EV = 60
TIMEOUT = 1 << 20

def mfma32(A, d, x, y, c):
    A(f'v_mfma_f32_16x16x32_bf16 {d}, {x}, {y}, {c}')
def mfma16(A, d, x, y, c):
    A(f'v_mfma_f32_16x16x16_bf16 {d}, {x}, {y}, {c}')

def check_regs(A, regs, tmp, lab_ok, lab_retry_fallthrough=None):
    regs = list(regs)
    cur = None
    if len(regs) >= 3:
        A(f'v_max3_u32 v{tmp}, v{regs[0]}, v{regs[1]}, v{regs[2]}'); rest = regs[3:]
    else:
        A(f'v_max_u32 v{tmp}, v{regs[0]}, v{regs[1]}'); rest = regs[2:]
    while rest:
        if len(rest) >= 2:
            A(f'v_max3_u32 v{tmp}, v{tmp}, v{rest[0]}, v{rest[1]}'); rest = rest[2:]
        else:
            A(f'v_max_u32 v{tmp}, v{tmp}, v{rest[0]}'); rest = rest[1:]
    A(f'v_cmp_eq_u32 vcc, -1, v{tmp}')
    A(f's_cbranch_vccz {lab_ok}')

def retry_tail(A, lab_top, abort, sleep=0, site=None):
    if site is not None:
        A(f's_add_u32 s{90+site}, s{90+site}, 1')
    if sleep:
        A(f's_sleep {sleep}')
    A(f'''s_add_u32 s{S_TO}, s{S_TO}, 1
    s_cmp_lt_u32 s{S_TO}, {TIMEOUT}
    s_cbranch_scc1 {lab_top}
    s_branch {abort}''')

def stamp(A, cfg, idx):
    if not cfg.get('stamps'):
        return
    l = A.lab('st')
    A(f'''s_cmp_lg_u32 s{S_STEP}, {cfg.get('tstep', 30)}
    s_cbranch_scc1 {l}
    s_memtime s[56:57]
    s_waitcnt lgkmcnt(0)
    s_mov_b32 s{74+idx}, s56
    {l}:''')

class Cap:
    def __init__(self): self.l=[]
    def __call__(self, t):
        for x in t.split('\n'):
            x=x.strip()
            if x: self.l.append(x)
    def nop(self,n):
        while n>0:
            k=min(n,16); self.l.append('s_nop %d'%(k-1)); n-=k

def weave(A, prim, sec, start=0, every=2):
    sec=list(sec); nxt=start
    for i,x in enumerate(prim):
        A(x)
        if sec and i>=nxt and not x.startswith('s_waitcnt') :
            A(sec.pop(0)); nxt=i+every
    for x in sec: A(x)

def vpx_compute(A):
    for kt in range(2):
        for tau in range(3):
            d = V_VPXA + (kt * 3 + tau) * 4
            for ks in range(4):
                c = '0' if ks == 0 else v(d, 4)
                mfma32(A, v(d, 4), v(V_VX + (kt * 4 + ks) * 4, 4), a(A_WO + (ks * 3 + tau) * 4, 4), c)
    A.nop(8)
    for tau in range(3):
        for kt in range(2):
            d = V_VPXA + (kt * 3 + tau) * 4
            A(f'v_cvt_pk_bf16_f32 v{V_VPX + tau*4 + kt*2}, v{d}, v{d+1}')
            A(f'v_cvt_pk_bf16_f32 v{V_VPX + tau*4 + kt*2 + 1}, v{d+2}, v{d+3}')

def load_kx(A, soff):
    for kt in range(2):
        for ks in range(4):
            A(f'buffer_load_dwordx4 {a(A_KX + (kt*4+ks)*4, 4)}, v{V_KX0+kt}, s[{S_WS}:{S_WS+3}], {soff} offen offset:{ks*1024}')
def load_vx(A, soff):
    for kt in range(2):
        for ks in range(4):
            A(f'buffer_load_dwordx4 {v(V_VX + (kt*4+ks)*4, 4)}, v{V_VX0+kt}, s[{S_WS}:{S_WS+3}], {soff} offen offset:{ks*1024}')

def dma_list(seg_k_sreg, seg_v_sreg):
    ws = f's[{S_WS}:{S_WS+3}]'
    out = []
    for reg, (sreg, goff, loff) in enumerate(((seg_k_sreg, KX_OFF, KXL), (seg_v_sreg, VX_OFF, VXL))):
        for hh in range(4):
            for half in range(2):
                grp = [f's_add_u32 s{S_D0}, s{S_HB}, s{sreg}',
                       f's_add_u32 s{S_D0}, s{S_D0}, {goff + (hh << 19) + half * 4096}',
                       f's_mov_b32 m0, {loff + hh * 8192 + half * 4096}',
                       's_nop 0']
                for q in range(4):
                    grp.append(f'buffer_load_dwordx4 v{V_L16}, {ws}, s{S_D0} offen offset:{q*1024} lds')
                out.append(grp)
    return out

def lds_kx(A):
    for i in range(8):
        A(f'ds_read_b128 {a(A_KX + i*4, 4)}, v{V_KLR} offset:{i*1024}')
def lds_vx(A):
    for i in range(8):
        A(f'ds_read_b128 {v(V_VX + i*4, 4)}, v{V_KLR} offset:{32768 + i*1024}')

def proj_tile(A, wbase):
    for ks in range(20):
        d = V_ACC if ks % 2 == 0 else V_ACC2
        c = '0' if ks < 2 else v(d, 4)
        mfma32(A, v(d, 4), a(wbase + ks * 4, 4), v(V_MEMF + (ks // 2) * 4, 4), c)

def proj_fin(A, r0, r1):
    for r in range(4):
        A(f'v_add_f32_dpp v{V_ACC+r}, v{V_ACC2+r}, v{V_ACC+r} row_ror:8 row_mask:0xf bank_mask:0xf')
    A(f'''v_cvt_pk_bf16_f32 v{r0}, v{V_ACC}, v{V_ACC+1}
    v_cvt_pk_bf16_f32 v{r1}, v{V_ACC+2}, v{V_ACC+3}
    v_min_u32 v{r0}, s{S_SENT}, v{r0}
    v_min_u32 v{r1}, s{S_SENT}, v{r1}''')

def max_chain(regs, tmp):
    regs = list(regs); out = []
    out.append(f'v_max3_u32 v{tmp}, v{regs[0]}, v{regs[1]}, v{regs[2]}'); rest = regs[3:]
    while rest:
        if len(rest) >= 2:
            out.append(f'v_max3_u32 v{tmp}, v{tmp}, v{rest[0]}, v{rest[1]}'); rest = rest[2:]
        else:
            out.append(f'v_max_u32 v{tmp}, v{tmp}, v{rest[0]}'); rest = rest[1:]
    return out

def hist_handoff(A):
    A(f'ds_write_b128 v{V_HIL}, v[{V_HK}:{V_HK+3}] offset:{HISTL}')
def wide(A, src0, src1, dst):
    A(f'''v_mov_b32 v{dst}, v{src0}
    v_mov_b32 v{dst+1}, v{src1}
    v_mov_b32 v{dst+2}, v{src0}
    v_mov_b32 v{dst+3}, v{src1}
    s_nop 1
    v_permlane16_swap_b32 v{dst}, v{dst+2}
    v_permlane16_swap_b32 v{dst+1}, v{dst+3}''')
def hist_store(A, from_lds=True):
    ws = f's[{S_WS}:{S_WS+3}]'
    A(f'ds_read_b128 v[{V_H2}:{V_H2+3}], v{V_HIL} offset:{HISTL}')
    for (s0, areg, soff, off) in ((V_HK, V_HF, S_HFO, 0), (V_HVV, V_HV, S_HVO, 0)):
        wide(A, s0, s0 + 1, V_HT)
        A(f'''s_mov_b64 exec, s[{M_EV}:{M_EV+1}]
        buffer_store_dwordx4 v[{V_HT}:{V_HT+3}], v{areg}, {ws}, s{soff} offen sc1
        s_mov_b64 exec, -1
        s_nop 1''')
    A('s_waitcnt lgkmcnt(0)')
    for (s0, areg, soff) in ((V_H2, V_HF2, S_HFO), (V_H2 + 2, V_HV2, S_HVO)):
        wide(A, s0, s0 + 1, V_HT)
        A(f'''s_mov_b64 exec, s[{M_EV}:{M_EV+1}]
        buffer_store_dwordx4 v[{V_HT}:{V_HT+3}], v{areg}, {ws}, s{soff} offen sc1
        s_mov_b64 exec, -1
        s_nop 1''')
def hist_signal(A, prev=False):
    ws = f's[{S_WS}:{S_WS+3}]'
    if prev:
        A(f's_sub_u32 s{S_D0}, s{S_STEP}, 1')
        A(f's_lshl_b32 s{S_D0}, s{S_D0}, 10')
    else:
        A(f's_lshl_b32 s{S_D0}, s{S_STEP}, 10')
    A(f'''v_mov_b32 v2, 1
    v_mov_b32 v3, 1
    s_mov_b64 exec, 1
    buffer_store_dwordx2 v[2:3], v{V_FLH}, {ws}, s{S_D0} offen sc1
    s_mov_b64 exec, -1''')
def hist_prev(A):
    l = A.lab('hp')
    A(f's_cmp_eq_u32 s{S_STEP}, 0')
    A(f's_cbranch_scc1 {l}')
    hist_signal(A, prev=True)
    A(f'{l}:')
def kv_wait(A, seg_sreg, abort):
    ws = f's[{S_WS}:{S_WS+3}]'
    lp = A.lab('kvw'); ok = A.lab('kvok')
    A(f'''s_lshl_b32 s{S_D1}, s{seg_sreg}, 2
    s_mov_b32 s{S_TO}, 0
    {lp}:
    buffer_load_dword v2, v{V_FLKV}, {ws}, s{S_D1} offen sc1
    s_waitcnt vmcnt(0)
    s_nop 0
    v_readfirstlane_b32 s15, v2
    s_nop 3
    s_cmp_ge_u32 s15, 4
    s_cbranch_scc1 {ok}
    s_sleep 2
    s_add_u32 s{S_TO}, s{S_TO}, 1
    s_cmp_lt_u32 s{S_TO}, {TIMEOUT}
    s_cbranch_scc1 {lp}
    s_branch {abort}
    {ok}:''')

def gen_loop(A, cfg, fast, P):
    st = '' if fast else 'sc1'
    ws = f's[{S_WS}:{S_WS+3}]'
    abort = P + '_abort'
    top = A.lab('top')
    def vx_loads(soff):
        c = Cap(); load_vx(c, soff); return c.l
    def kx_loads(soff):
        c = Cap(); load_kx(c, soff); return c.l
    vxl = vx_loads(f's{S_KXN}')
    kxl = kx_loads(f's{S_KXN}')
    f_loads = [f'buffer_load_dwordx4 {v(V_F+ks*4,4)}, v{V_FLD}, {ws}, s{S_E2C} offen offset:{ks*1024} sc1' for ks in range(4)]
    fv_loads = [f'buffer_load_dwordx4 {v(V_FV+ks*4,4)}, v{V_FVLD}, {ws}, s{S_E2C} offen offset:{ks*512} sc1' for ks in range(4)]
    e3_loads = [f'buffer_load_dwordx4 {v(V_E3P,4)}, v{V_E3L0}, {ws}, s{S_E3C} offen sc1',
                f'buffer_load_dwordx4 {v(V_E3P+4,4)}, v{V_E3L1}, {ws}, s{S_E3C} offen sc1']
    A(f'{top}:')
    A(f'''s_and_b32 s15, s{S_STEP}, 3
    s_lshl_b32 s{S_E1C}, s15, 14
    s_add_u32 s{S_E1C1}, s{S_E1C}, 6144
    s_add_u32 s{S_E1C2}, s{S_E1C}, 9216
    s_lshl_b32 s{S_E2C}, s15, 15
    s_mul_i32 s{S_E3C}, s15, {E3_S}
    s_add_u32 s15, s{S_STEP}, 1
    s_lshl_b32 s{S_KXN}, s15, 13
    s_and_b32 s15, s15, 3
    s_lshl_b32 s{S_E1N}, s15, 14
    s_add_u32 s15, s{S_STEP}, 2
    s_lshl_b32 s{S_PFO}, s15, 13
    s_and_b32 s15, s15, 3
    s_lshl_b32 s{S_E2CL}, s15, 15
    s_mul_i32 s{S_E3CL}, s15, {E3_S}
    s_add_u32 s15, s{S_STEP}, 3
    s_and_b32 s15, s15, 3
    s_lshl_b32 s{S_E1CL}, s15, 14
    s_lshl_b32 s{S_HFO}, s{S_STEP}, 17
    s_lshl_b32 s{S_HVO}, s{S_STEP}, 16''')
    if cfg.get('steplog'):
        l_sl = A.lab('sl')
        A(f'''s_cmp_lg_u32 s{S_W}, 0
        s_cbranch_scc1 {l_sl}
        s_memtime s[56:57]
        s_memrealtime s[58:59]
        s_waitcnt lgkmcnt(0)
        s_lshl_b32 s15, s{S_G}, 4
        s_add_u32 s15, s15, s{S_TT}
        s_lshl_b32 s15, s15, 6
        s_add_u32 s15, s15, s{S_STEP}
        s_lshl_b32 s15, s15, 3
        s_add_u32 s15, s15, {STAMP_OFF + 131072}
        v_mov_b32 v2, s56
        v_mov_b32 v3, s58
        v_mov_b32 v4, s15
        s_mov_b64 exec, 1
        buffer_store_dwordx2 v[2:3], v4, {ws}, 0 offen
        s_mov_b64 exec, -1
        {l_sl}:''')
    A(vxl[0]); A(vxl[1])
    l_stage = A.lab('stage')
    A(f's_cmp_eq_u32 s{S_STEP}, 0')
    A(f's_cbranch_scc1 {l_stage}')
    l_p = A.lab('e1poll'); l_ok = A.lab('e1ok'); l_two = A.lab('e1two'); l_skip = A.lab('e1skip')
    A(f's_cmp_eq_u32 s{S_W}, 3')
    A(f's_cbranch_scc1 {l_skip}')
    A(f's_mov_b32 s{S_TO}, 0')
    if cfg.get('e1_sleep'):
        A(f's_sleep {cfg["e1_sleep"]}')
    A(f'{l_p}:')
    A(f'buffer_load_dwordx4 {v(V_E1P,4)}, v{V_E1LD}, {ws}, s{S_E1C} offen sc1')
    A(f'buffer_load_dwordx4 {v(V_E1P+4,4)}, v{V_E1LD}, {ws}, s{S_E1C} offen offset:3072 sc1')
    A(f'buffer_load_dwordx4 {v(V_E1P+8,4)}, v{V_E1LD}, {ws}, s{S_E1C1} offen sc1')
    A(f's_cmp_lg_u32 s{S_W}, 0')
    A(f's_cbranch_scc1 {l_two}')
    A(f'buffer_load_dwordx4 {v(V_E1Q,4)}, v{V_E1LD}, {ws}, s{S_E1C2} offen sc1')
    A(f'{l_two}:')
    A('s_waitcnt vmcnt(0)')
    check_regs(A, list(range(V_E1P, V_E1P + 12)) + list(range(V_E1Q, V_E1Q + 4)), 2, l_ok)
    retry_tail(A, l_p, abort, cfg.get('e1_retry_sleep', 0), 0 if (cfg.get('stamps') or cfg.get('tot')) else None)
    A(f'{l_ok}:')
    A(f'{l_stage}:')
    stamp(A, cfg, 0)
    A(f's_cmp_eq_u32 s{S_W}, 3')
    A(f's_cbranch_scc1 {l_skip}')
    A(f'ds_write_b128 v{V_E1W}, {v(V_E1P,4)}')
    A(f'ds_write_b128 v{V_E1W}, {v(V_E1P+4,4)} offset:3072')
    A(f'ds_write_b128 v{V_E1W}, {v(V_E1P+8,4)} offset:6144')
    l_n3 = A.lab('n3')
    A(f's_cmp_lg_u32 s{S_W}, 0')
    A(f's_cbranch_scc1 {l_n3}')
    A(f'ds_write_b128 v{V_E1W}, {v(V_E1Q,4)} offset:9216')
    A(f'{l_n3}:')
    A(f'{l_skip}:')
    A('s_waitcnt lgkmcnt(0)')
    A('s_barrier')
    stamp(A, cfg, 1)
    for p in range(10):
        A(f'ds_read_b128 {v(V_MEMF+p*4,4)}, v{V_MEMR} offset:{p*1024}')
    A(vxl[2])
    for ks in range(20):
        if ks % 2 == 0:
            A(f's_waitcnt lgkmcnt({9 - ks // 2})')
        d = V_ACC if ks % 2 == 0 else V_ACC2
        c = '0' if ks < 2 else v(d, 4)
        mfma32(A, v(d, 4), a(A_WA + ks * 4, 4), v(V_MEMF + (ks // 2) * 4, 4), c)
        if ks == 5: A(vxl[3])
        if ks == 12: A(vxl[4])
    A.nop(8)
    stamp(A, cfg, 2)
    proj_fin(A, 2, 3)
    A(f'''s_mov_b64 exec, s[{M_I8}:{M_I8+1}]
    buffer_store_dwordx2 v[2:3], v{V_FST}, {ws}, s{S_E2C} offen {st}
    buffer_store_dwordx2 v[{V_SENT}:{V_SENT+1}], v{V_FST}, {ws}, s{S_E2CL} offen {st}''')
    l_w01 = A.lab('w01'); l_j = A.lab('j')
    l_done = P + '_done'
    A(f's_cmp_lt_u32 s{S_W}, 2')
    A(f's_cbranch_scc1 {l_w01}')
    A('s_mov_b64 exec, -1')
    A(f'v_mov_b32 v{V_HK}, v2')
    A(f'v_mov_b32 v{V_HK+1}, v3')
    c = Cap(); proj_tile(c, A_WV)
    fpos = cfg.get('f_in_v', 13)
    for i, x in enumerate(c.l):
        A(x)
        if i in (1, 5, 9): A(vxl[5 + (i - 1) // 4])
        if i >= fpos and i - fpos < 4: A(f_loads[i - fpos])
    for q in range(max(0, 20 - fpos), 4): A(f_loads[q])
    A.nop(8)
    proj_fin(A, 4, 5)
    A(f'''s_mov_b64 exec, s[{M_I8}:{M_I8+1}]
    buffer_store_dwordx2 v[4:5], v{V_FVST}, {ws}, s{S_E2C} offen {st}
    buffer_store_dwordx2 v[{V_SENT}:{V_SENT+1}], v{V_FVST}, {ws}, s{S_E2CL} offen {st}
    s_mov_b64 exec, -1
    v_mov_b32 v{V_HVV}, v4
    v_mov_b32 v{V_HVV+1}, v5''')
    stamp(A, cfg, 3)
    l_last = A.lab('last23')
    A(f's_cmp_ge_u32 s{S_STEP}, 63')
    A(f's_cbranch_scc1 {l_last}')
    A(f's_mov_b32 s{S_TO}, 0')
    l_sc = A.lab('scores'); l_sc2 = A.lab('scores2')
    def scores(extra):
        for ks in range(4):
            A(f's_waitcnt vmcnt({extra + 3 - ks})')
            f = v(V_F + ks * 4, 4)
            mfma32(A, v(V_TM, 4), f, f, v(V_CINIT, 4) if ks == 0 else v(V_TM, 4))
            mfma32(A, v(V_T0, 4), a(A_KX + ks * 4, 4), f, '0' if ks == 0 else v(V_T0, 4))
            mfma32(A, v(V_T1, 4), a(A_KX + (4 + ks) * 4, 4), f, '0' if ks == 0 else v(V_T1, 4))
    l_ok = A.lab('e2ok'); l_p = A.lab('e2poll')
    scores(2)
    check_regs(A, range(V_F, V_F + 16), 2, l_ok)
    A(f's_branch {l_p}')
    A(f'{l_w01}:')
    A('s_mov_b64 exec, -1')
    for x in vxl[5:8]: A(x)
    if cfg.get('e2_sleep'):
        A(f's_sleep {cfg["e2_sleep"]}')
    stamp(A, cfg, 3)
    l_bd = A.lab('bd')
    A(f's_cmp_ge_u32 s{S_STEP}, 63')
    A(f's_cbranch_scc1 {l_bd}')
    A(f's_mov_b32 s{S_TO}, 0')
    A(f'{l_p}:')
    if cfg.get('stamps') or cfg.get('tot'): A('s_add_u32 s91, s91, 1')
    for x in f_loads: A(x)
    scores(0)
    check_regs(A, range(V_F, V_F + 16), 2, l_ok)
    retry_tail(A, l_p, abort, cfg.get('e2_retry_sleep', 0), None)
    A(f'{l_ok}:')
    for x in fv_loads: A(x)
    A(f'v_readfirstlane_b32 s{S_KVF}, v{V_KVV}')
    stamp(A, cfg, 4)
    allT = list(range(V_TM, V_TM + 4)) + list(range(V_T0, V_T0 + 4)) + list(range(V_T1, V_T1 + 4))
    A(f'''v_max3_f32 v2, v{V_TM}, v{V_TM+1}, v{V_TM+2}
    v_max3_f32 v3, v{V_TM+3}, v{V_T0}, v{V_T0+1}
    v_max3_f32 v4, v{V_T0+2}, v{V_T0+3}, v{V_T1}
    v_max3_f32 v5, v{V_T1+1}, v{V_T1+2}, v{V_T1+3}
    v_max3_f32 v2, v2, v3, v4
    v_max_f32 v2, v2, v5
    v_mov_b32 v3, v2
    s_nop 1
    v_permlane16_swap_b32 v2, v3
    v_max_f32 v2, v2, v3
    v_mov_b32 v3, v2
    s_nop 1
    v_permlane32_swap_b32 v2, v3
    v_max_f32 v2, v2, v3
    v_mul_f32 v2, s{S_C}, v2''')
    for r in allT:
        A(f'v_fma_f32 v{r}, v{r}, s{S_C}, -v2')
    A(kxl[0])
    for i, r in enumerate(allT):
        A(f'v_exp_f32 v{r}, v{r}')
        if i == 7: A(kxl[1])
    A('s_nop 0')
    A(f'''v_cvt_pk_bf16_f32 v{V_PX}, v{V_T0}, v{V_T0+1}
    v_cvt_pk_bf16_f32 v{V_PX+1}, v{V_T0+2}, v{V_T0+3}
    v_cvt_pk_bf16_f32 v{V_PX+2}, v{V_T1}, v{V_T1+1}
    v_cvt_pk_bf16_f32 v{V_PX+3}, v{V_T1+2}, v{V_T1+3}
    v_cvt_pk_bf16_f32 v{V_PM}, v{V_TM}, v{V_TM+1}
    v_cvt_pk_bf16_f32 v{V_PM+1}, v{V_TM+2}, v{V_TM+3}''')
    A.nop(2)
    for tau in range(3):
        mfma32(A, v(V_D + tau * 4, 4), v(V_VPX + tau * 4, 4), v(V_PX, 4), '0')
    mfma32(A, v(V_TM, 4), a(A_ONE, 4), v(V_PX, 4), '0')
    stamp(A, cfg, 5)
    l_p = A.lab('fvgo'); l_ok = A.lab('fvok')
    A(f's_mov_b32 s{S_TO}, 0')
    A(f'{l_p}:')
    mc = max_chain(range(V_FV, V_FV + 16), 2)
    for ks in range(4):
        A(f's_waitcnt vmcnt({2+3-ks})')
        for tau in range(3):
            d = V_VPMA + tau * 4
            mfma32(A, v(d, 4), v(V_FV + ks * 4, 4), a(A_WO + (ks * 3 + tau) * 4, 4), '0' if ks == 0 else v(d, 4))
            if ks >= 1 and mc:
                j = 8 - len(mc)
                if (2 + 2 * j) // 4 <= ks - (0 if ks == 3 else 0) and (2 + 2 * j) // 4 <= ks:
                    A(mc.pop(0))
    for x in mc: A(x)
    A('v_cmp_eq_u32 vcc, -1, v2')
    A(f's_cbranch_vccz {l_ok}')
    for x in fv_loads: A(x)
    A('s_waitcnt vmcnt(0)')
    retry_tail(A, l_p, abort, 0, 2 if (cfg.get('stamps') or cfg.get('tot')) else None)
    A(f'{l_ok}:')
    stamp(A, cfg, 6)
    mfma16(A, v(V_TM, 4), a(A_ONE, 2), v(V_PM, 2), v(V_TM, 4))
    A.nop(cfg.get('vpm_nop', 4))
    for tau in range(3):
        d = V_VPMA + tau * 4
        A(f'v_cvt_pk_bf16_f32 v{V_VPM+tau*2}, v{d}, v{d+1}')
        A(f'v_cvt_pk_bf16_f32 v{V_VPM+tau*2+1}, v{d+2}, v{d+3}')
    A(f'v_rcp_f32 v2, v{V_TM}')
    A('s_nop 0')
    for tau in range(3):
        mfma16(A, v(V_D + tau * 4, 4), v(V_VPM + tau * 2, 2), v(V_PM, 2), v(V_D + tau * 4, 4))
    A(kxl[2])
    A.nop(5)
    for tau in range(3):
        for h in range(2):
            r = V_D + tau * 4 + h * 2
            A(f'v_pk_mul_f32 v[{r}:{r+1}], v[{r}:{r+1}], v[2:3] op_sel_hi:[1,0]')
        A(f'v_cvt_pk_bf16_f32 v{V_PX+0}, v{V_D+tau*4}, v{V_D+tau*4+1}' if False else f'v_cvt_pk_bf16_f32 v{V_T0+tau*2}, v{V_D+tau*4}, v{V_D+tau*4+1}')
        A(f'v_cvt_pk_bf16_f32 v{V_T0+tau*2+1}, v{V_D+tau*4+2}, v{V_D+tau*4+3}')
    A(f's_mov_b64 exec, s[{M_I8}:{M_I8+1}]')
    for tau in range(3):
        A(f'ds_write_b64 v{V_REDW}, v[{V_T0+tau*2}:{V_T0+tau*2+1}] offset:{tau*256}')
    A('s_mov_b64 exec, -1')
    l_h2 = A.lab('h2')
    A(f's_cmp_lg_u32 s{S_W}, 2')
    A(f's_cbranch_scc1 {l_h2}')
    hist_handoff(A)
    A(f'{l_h2}:')
    A(kxl[3])
    A('s_waitcnt lgkmcnt(0)')
    A('s_barrier')
    stamp(A, cfg, 7)
    l_nored = A.lab('nored'); l_w3 = A.lab('w3')
    A(f's_cmp_ge_u32 s{S_W}, 3')
    A(f's_cbranch_scc1 {l_w3}')
    A(f'ds_read_b128 {v(V_F,4)}, v{V_REDR}')
    A('s_waitcnt lgkmcnt(0)')
    mfma32(A, v(V_E3A, 4), a(A_SEL, 4), v(V_F, 4), '0')
    A.nop(8)
    A(f'''v_cvt_pk_bf16_f32 v2, v{V_E3A}, v{V_E3A+1}
    v_cvt_pk_bf16_f32 v3, v{V_E3A+2}, v{V_E3A+3}
    v_min_u32 v2, s{S_SENT}, v2
    v_min_u32 v3, s{S_SENT}, v3
    s_mov_b64 exec, s[{M_E1ST}:{M_E1ST+1}]
    buffer_store_dwordx2 v[2:3], v{V_E3ST}, {ws}, s{S_E3C} offen sc1
    buffer_store_dwordx2 v[{V_SENT}:{V_SENT+1}], v{V_E3ST}, {ws}, s{S_E3CL} offen sc1
    s_mov_b64 exec, -1''')
    stamp(A, cfg, 8)
    c = Cap(); vpx_compute(c)
    e3pos = cfg.get('e3_in_vpx', 14)
    nk = 0
    for i, x in enumerate(c.l):
        A(x)
        if i in (1, 5, 9, 13) and i < e3pos: A(kxl[4 + nk]); nk += 1
        if i == e3pos: A(e3_loads[0]); A(e3_loads[1])
    late = kxl[4 + nk:8]
    stamp(A, cfg, 9)
    l_p = A.lab('e3poll'); l_ok = A.lab('e3ok')
    A(f's_mov_b32 s{S_TO}, 0')
    A('s_waitcnt vmcnt(0)')
    check_regs(A, range(V_E3P, V_E3P + 8), 2, l_ok)
    A(f'{l_p}:')
    if cfg.get('stamps') or cfg.get('tot'): A('s_add_u32 s93, s93, 1')
    for x in e3_loads: A(x)
    A('s_waitcnt vmcnt(0)')
    check_regs(A, range(V_E3P, V_E3P + 8), 2, l_ok)
    retry_tail(A, l_p, abort, cfg.get('e3_retry_sleep', 0), None)
    A(f'{l_ok}:')
    stamp(A, cfg, 10)
    mfma32(A, v(V_E3A, 4), a(A_SEL, 4), v(V_E3P, 4), '0')
    mfma32(A, v(V_E3A, 4), a(A_SEL, 4), v(V_E3P + 4, 4), v(V_E3A, 4))
    for x in late: A(x)
    A.nop(8)
    A(f'''v_cvt_pk_bf16_f32 v2, v{V_E3A}, v{V_E3A+1}
    v_cvt_pk_bf16_f32 v3, v{V_E3A+2}, v{V_E3A+3}
    v_min_u32 v2, s{S_SENT}, v2
    v_min_u32 v3, s{S_SENT}, v3
    s_mov_b64 exec, s[{M_E1ST}:{M_E1ST+1}]
    buffer_store_dwordx2 v[2:3], v{V_E1ST}, {ws}, s{S_E1N} offen {st}
    buffer_store_dwordx2 v[{V_SENT}:{V_SENT+1}], v{V_E1ST}, {ws}, s{S_E1CL} offen {st}
    s_mov_b64 exec, -1''')
    l_e = A.lab('e')
    A(f's_branch {l_e}')
    A(f'{l_w3}:')
    hist_prev(A)
    hist_store(A)
    l_npf = A.lab('npf'); l_pf = A.lab('pf')
    A(f'''s_add_u32 s{S_D0}, s{S_STEP}, 3
    s_cmp_gt_u32 s{S_D0}, 63
    s_cbranch_scc1 {l_npf}
    s_cmp_ge_u32 s{S_KVF}, 4
    s_cbranch_scc1 {l_pf}''')
    kv_wait(A, S_D0, abort)
    A(f'''{l_pf}:
    s_mov_b64 exec, s[{M_L32}:{M_L32+1}]
    buffer_load_dword v{V_PFD}, v{V_PF}, {ws}, s{S_PFO} offen
    s_mov_b64 exec, -1
    {l_npf}:
    s_add_u32 s{S_D1}, s{S_STEP}, 4
    s_min_u32 s{S_D1}, s{S_D1}, 63
    s_lshl_b32 s{S_D1}, s{S_D1}, 2
    buffer_load_dword v{V_KVV}, v{V_FLKV}, {ws}, s{S_D1} offen sc1''')
    c = Cap(); vpx_compute(c)
    weave(A, c.l, kxl[4:8], start=2, every=6)
    if cfg.get('w3_sleep'):
        A(f's_sleep {cfg["w3_sleep"]}')
    A(f'{l_e}:')
    stamp(A, cfg, 11)
    A(f's_add_u32 s{S_STEP}, s{S_STEP}, 1')
    A(f's_branch {top}')
    A(f'{l_bd}:')
    A('s_barrier')
    A(f's_branch {P}_done')
    A(f'{l_last}:')
    l_l3 = A.lab('l3')
    A(f's_cmp_lg_u32 s{S_W}, 2')
    A(f's_cbranch_scc1 {l_l3}')
    hist_handoff(A)
    A('s_waitcnt lgkmcnt(0)')
    A('s_barrier')
    A(f's_branch {P}_done')
    A(f'{l_l3}:')
    A('s_barrier')
    hist_prev(A)
    hist_store(A)
    A('s_waitcnt vmcnt(0)')
    hist_signal(A)
    A(f's_branch {P}_done')

def gen_chain(cfg, name='chain_kernel'):
    P = 'CH'
    A = Asm(P)
    ws = f's[{S_WS}:{S_WS+3}]'
    if cfg.get('stamps') or cfg.get('tot'):
        A('s_memtime s[70:71]')
        A('s_memrealtime s[68:69]')
    A(f'''s_cmp_ge_u32 s2, 256
    s_cbranch_scc1 {P}_end
    s_load_dwordx2 s[46:47], s[0:1], {KA['ws']}
    s_getreg_b32 s{S_XCC}, hwreg(HW_REG_XCC_ID)
    s_and_b32 s{S_XCC}, s{S_XCC}, 7
    v_lshrrev_b32 v2, 6, v0
    v_and_b32 v1, 63, v0
    s_nop 0
    v_readfirstlane_b32 s{S_W}, v2
    s_waitcnt lgkmcnt(0)''')
    srd(A, S_WS, 46, 47, WS_BYTES)
    l_w = A.lab('rolewait'); l_poll = A.lab('rolepoll'); l_fast = A.lab('fast'); l_slow = A.lab('slow'); l_wr = A.lab('rolewr')
    A(f'''s_cmp_lg_u32 s{S_W}, 0
    s_cbranch_scc1 {l_w}
    s_mov_b64 exec, 1
    s_lshl_b32 s15, s{S_XCC}, 8
    s_add_u32 s15, s15, {CNT_OFF}
    v_mov_b32 v2, s15
    v_mov_b32 v3, 1
    buffer_atomic_add v3, v2, {ws}, 0 offen sc0
    s_waitcnt vmcnt(0)
    s_nop 0
    v_readfirstlane_b32 s{S_TK}, v3
    s_mov_b64 exec, -1
    v_lshlrev_b32 v2, 8, v1
    v_and_b32 v2, 0x7ff, v2
    v_add_u32 v2, {CNT_OFF}, v2
    v_mov_b32 v4, {PAR_OFF}
    s_mov_b32 s{S_TO}, 0
    {l_poll}:
    buffer_load_dword v3, v2, {ws}, 0 offen sc1
    buffer_load_dword v5, v4, {ws}, 0 offen sc1
    s_waitcnt vmcnt(0)
    s_nop 0''')
    for x in range(8):
        A(f'v_readlane_b32 s{48+x}, v3, {x}')
    A(f'''v_readfirstlane_b32 s{S_PAR}, v5
    s_nop 3
    s_min_u32 s15, s48, s49
    s_min_u32 s15, s15, s50
    s_min_u32 s15, s15, s51
    s_min_u32 s15, s15, s52
    s_min_u32 s15, s15, s53
    s_min_u32 s15, s15, s54
    s_min_u32 s15, s15, s55
    s_cmp_ge_u32 s15, 32
    s_cbranch_scc1 {l_fast}
    s_add_u32 s15, s48, s49
    s_add_u32 s15, s15, s50
    s_add_u32 s15, s15, s51
    s_add_u32 s15, s15, s52
    s_add_u32 s15, s15, s53
    s_add_u32 s15, s15, s54
    s_add_u32 s15, s15, s55
    s_cmp_ge_u32 s15, 256
    s_cbranch_scc1 {l_slow}
    s_sleep 1
    s_add_u32 s{S_TO}, s{S_TO}, 1
    s_cmp_lt_u32 s{S_TO}, {TIMEOUT}
    s_cbranch_scc1 {l_poll}
    s_mov_b32 s15, 999
    s_mov_b32 s{S_MODE}, 0
    s_branch {l_wr}
    {l_fast}:
    s_mov_b32 s{S_MODE}, 1
    s_lshl_b32 s15, s{S_XCC}, 5
    s_add_u32 s15, s15, s{S_TK}
    s_branch {l_wr}
    {l_slow}:
    s_mov_b32 s{S_MODE}, 0
    s_mov_b32 s15, s{S_TK}''')
    for x in range(7):
        A(f'''s_cmp_gt_u32 s{S_XCC}, {x}
        s_cselect_b32 s56, s{48+x}, 0
        s_add_u32 s15, s15, s56''')
    A(f'''{l_wr}:
    v_mov_b32 v2, {ROLE}
    v_mov_b32 v3, s15
    v_mov_b32 v4, s{S_MODE}
    v_mov_b32 v5, s{S_PAR}
    ds_write_b32 v2, v3
    ds_write_b32 v2, v4 offset:4
    ds_write_b32 v2, v5 offset:8
    s_waitcnt lgkmcnt(0)
    {l_w}:
    s_barrier
    v_mov_b32 v2, {ROLE}
    ds_read_b32 v3, v2
    ds_read_b32 v4, v2 offset:4
    ds_read_b32 v5, v2 offset:8
    s_waitcnt lgkmcnt(0)
    s_nop 0
    v_readfirstlane_b32 s15, v3
    v_readfirstlane_b32 s{S_MODE}, v4
    v_readfirstlane_b32 s{S_PAR}, v5
    s_nop 3
    s_and_b32 s{S_PAR}, s{S_PAR}, 1
    s_cmp_ge_u32 s15, 128
    s_cbranch_scc1 {P}_worker
    s_lshr_b32 s{S_G}, s15, 4
    s_and_b32 s{S_TT}, s15, 15''')
    A(f'''v_and_b32 v6, 15, v1
    v_lshrrev_b32 v7, 4, v1
    v_and_b32 v8, 7, v1
    v_cmp_gt_u32 vcc, 8, v6
    s_mov_b64 s[{M_I8}:{M_I8+1}], vcc
    v_cmp_gt_u32 vcc, 32, v1
    s_mov_b64 s[{M_L32}:{M_L32+1}], vcc
    s_mov_b32 s{S_C}, 0x3e0293ee
    s_mov_b32 s{S_SENT}, 0xfffffffe
    v_mov_b32 v{V_SENT}, -1
    v_mov_b32 v{V_SENT+1}, -1''')
    import struct
    c = struct.unpack('<I', struct.pack('<f', 128 ** -0.5 * 1.4426950408889634))[0]
    A(f's_mov_b32 s{S_C}, {hex(c)}')
    A(f'''s_mul_i32 s15, s{S_G}, {E1_G}
    s_add_u32 s15, s15, {E1_OFF}
    s_lshl_b32 s19, s{S_W}, 10
    v_lshlrev_b32 v2, 4, v1
    v_add_u32 v{V_E1W}, s19, v2
    v_add_u32 v{V_E1LD}, s15, v{V_E1W}
    v_add_u32 v{V_E1W}, {MEML}, v{V_E1W}
    v_lshlrev_b32 v3, 7, v7
    v_lshlrev_b32 v4, 4, v8
    v_lshrrev_b32 v5, 3, v6
    v_lshlrev_b32 v5, 9, v5
    v_add3_u32 v{V_MEMR}, v3, v4, v5
    v_add_u32 v{V_MEMR}, {MEML}, v{V_MEMR}''')
    A(f'''s_mul_i32 s19, s{S_TT}, 5
    s_lshl_b32 s45, s{S_W}, 1
    s_add_u32 s19, s19, s45
    s_lshl_b32 s19, s19, 7
    s_add_u32 s19, s19, s15
    v_lshrrev_b32 v2, 3, v6
    v_lshlrev_b32 v2, 7, v2
    v_lshlrev_b32 v3, 3, v7
    v_add3_u32 v{V_E1ST}, v2, v3, v4
    v_add_u32 v{V_E1ST}, s19, v{V_E1ST}
    s_mov_b64 s[{M_E1ST}:{M_E1ST+1}], s[{M_L32}:{M_L32+1}]
    s_cmp_eq_u32 s{S_W}, 2
    s_cbranch_scc0 {P}_e1m
    s_and_b64 s[{M_E1ST}:{M_E1ST+1}], s[{M_L32}:{M_L32+1}], s[{M_I8}:{M_I8+1}]
    {P}_e1m:''')
    A(f'''s_mul_i32 s15, s{S_G}, {E2_G}
    s_add_u32 s15, s15, {E2_OFF}
    s_and_b32 s19, s{S_W}, 1
    s_lshr_b32 s45, s{S_W}, 1
    v_lshrrev_b32 v2, 1, v7
    s_lshl_b32 s46, s19, 1
    v_add_u32 v2, s46, v2
    v_and_b32 v3, 1, v7
    v_lshlrev_b32 v3, 3, v3               ; (fg&1)*8
    v_lshlrev_b32 v4, 4, v6               ; i*16
    v_lshlrev_b32 v5, 8, v2
    v_add3_u32 v5, v5, v3, v4
    s_lshl_b32 s46, s45, 7                ; isK*128
    v_add_u32 v5, s46, v5                 ; inner F
    s_lshl_b32 s46, s{S_TT}, 10
    s_add_u32 s46, s46, s15
    v_add_u32 v{V_FST}, s46, v5
    v_lshlrev_b32 v9, 7, v2
    v_add3_u32 v9, v9, v3, v4
    s_lshl_b32 s46, s{S_TT}, 9
    s_add_u32 s46, s46, s15
    s_add_u32 s46, s46, 16384
    v_add_u32 v{V_FVST}, s46, v9
    s_lshl_b32 s46, s{S_G}, 4
    s_add_u32 s46, s46, s{S_TT}
    s_lshl_b32 s47, s46, 10
    s_add_u32 s47, s47, {HF_OFF}
    v_add_u32 v{V_HF}, s47, v5
    s_lshl_b32 s47, s46, 9
    s_add_u32 s47, s47, {HV_OFF}
    v_add_u32 v{V_HV}, s47, v9
    s_lshl_b32 s47, s46, 3                ; (16g+t)*8 = h_p*32 + (t&3)*8
    s_add_u32 s47, s47, {FLG_H}
    v_mov_b32 v{V_FLH}, s47
    s_lshl_b32 s47, s{S_G}, 8
    s_add_u32 s47, s47, {FLG_KV}
    v_mov_b32 v{V_FLKV}, s47
    v_subrev_u32 v{V_HF2}, 512, v{V_HF}
    v_subrev_u32 v{V_HV2}, 256, v{V_HV}
    v_lshlrev_b32 v{V_HIL}, 4, v1
    v_and_b32 v2, 1, v7
    v_cmp_eq_u32 vcc, 0, v2
    s_and_b64 s[{M_EV}:{M_EV+1}], vcc, s[{M_I8}:{M_I8+1}]
    v_mov_b32 v{V_KVV}, 0
    v_lshlrev_b32 v2, 4, v1
    s_lshl_b32 s46, s{S_W}, 12
    s_add_u32 s46, s46, s15
    v_add_u32 v{V_FLD}, s46, v2
    v_lshlrev_b32 v3, 7, v7
    v_lshlrev_b32 v4, 4, v8
    v_add_u32 v3, v3, v4
    s_lshl_b32 s46, s{S_W}, 11
    s_add_u32 s46, s46, s15
    s_add_u32 s46, s46, 16384
    v_add_u32 v{V_FVLD}, s46, v3''')
    A(f'''s_lshl_b32 s46, s{S_G}, 2
    s_add_u32 s46, s46, s{S_W}           ; h
    s_lshl_b32 s47, s46, 19
    v_add_u32 v{V_KX0}, s47, v2
    v_add_u32 v{V_KX1}, 4096, v{V_KX0}
    v_add_u32 v{V_VX0}, {VX_OFF}, v{V_KX0}
    v_add_u32 v{V_VX1}, {VX_OFF}, v{V_KX1}''')
    A(f'''v_and_b32 v2, 31, v1
    s_lshl_b32 s46, s{S_TT}, 5
    v_add_u32 v2, s46, v2
    v_lshrrev_b32 v3, 8, v2
    v_mul_u32_u24 v3, 0x1002, v3
    v_lshlrev_b32 v3, 12, v3
    v_lshrrev_b32 v4, 6, v2
    v_and_b32 v4, 3, v4
    s_lshl_b32 s46, s{S_G}, 2
    v_add_u32 v4, s46, v4
    v_lshlrev_b32 v4, 19, v4
    v_and_b32 v2, 63, v2
    v_lshlrev_b32 v2, 7, v2
    v_add3_u32 v{V_PF}, v2, v3, v4''')
    assert KX_OFF == 0 and VX_OFF == 1 << 24
    A(f'''v_lshlrev_b32 v{V_L16}, 4, v1
    s_lshl_b32 s46, s{S_W}, 13
    s_add_u32 s46, s46, {KXL}
    v_add_u32 v{V_KLR}, s46, v{V_L16}''')
    A(f'''s_mul_i32 s47, s{S_W}, 768
    s_add_u32 s47, s47, {RED}
    v_lshrrev_b32 v2, 1, v7
    v_lshlrev_b32 v2, 7, v2
    v_lshlrev_b32 v3, 4, v6
    v_and_b32 v4, 1, v7
    v_lshlrev_b32 v4, 3, v4
    v_add3_u32 v{V_REDW}, v2, v3, v4
    v_add_u32 v{V_REDW}, s47, v{V_REDW}
    v_mul_u32_u24 v2, 768, v7
    s_min_u32 s47, s{S_W}, 2
    s_lshl_b32 s47, s47, 8
    s_add_u32 s47, s47, {RED}
    v_add3_u32 v{V_REDR}, v2, v3, s47''')
    def phys(reg):
        A(f'''v_lshrrev_b32 v2, 13, v{reg}
        v_lshlrev_b32 v2, 14, v2
        v_and_b32 v{reg}, 0x1fff, v{reg}
        v_or_b32 v{reg}, v2, v{reg}
        v_add_u32 v{reg}, s45, v{reg}''')
    A(f'''s_lshl_b32 s45, s{S_PAR}, 13
    s_add_u32 s45, s45, {E3_OFF}
    s_mul_i32 s46, s{S_TT}, 5120
    s_mul_i32 s47, s{S_G}, 640
    s_add_u32 s47, s47, s46
    s_min_u32 s15, s{S_W}, 2
    s_lshl_b32 s15, s15, 8
    s_add_u32 s47, s47, s15
    v_lshlrev_b32 v3, 4, v6
    v_and_b32 v4, 1, v7
    v_lshlrev_b32 v4, 3, v4
    v_add3_u32 v{V_E3ST}, v3, v4, s47
    v_min_u32 v{V_E3ST}, 81912, v{V_E3ST}''')
    phys(V_E3ST)
    A(f'''s_cmp_eq_u32 s{S_W}, 2
    s_cselect_b32 s47, 7, 15
    v_and_b32 v3, s47, v6
    s_min_u32 s47, s{S_W}, 2
    s_lshl_b32 s47, s47, 4
    v_add_u32 v3, s47, v3
    v_lshlrev_b32 v3, 4, v3
    v_mul_u32_u24 v4, 640, v7
    v_add3_u32 v{V_E3L0}, v3, v4, s46
    v_add_u32 v{V_E3L1}, 2560, v{V_E3L0}''')
    phys(V_E3L0); phys(V_E3L1)
    A(f'''v_mov_b32 v2, 0xff800000
    v_mov_b32 v3, 0
    v_cndmask_b32 v{V_CINIT}, v3, v2, s[{M_L32}:{M_L32+1}]
    v_mov_b32 v{V_CINIT+1}, v{V_CINIT}
    v_mov_b32 v{V_CINIT+2}, v{V_CINIT}
    v_mov_b32 v{V_CINIT+3}, v{V_CINIT}
    v_mov_b32 v2, 0x3f803f80''')
    for r in range(4):
        A(f'v_accvgpr_write_b32 a{A_ONE+r}, v2')
    A(f'''v_and_b32 v3, 1, v6
    v_lshlrev_b32 v3, 4, v3
    v_mov_b32 v4, 0x3f80
    v_lshlrev_b32 v4, v3, v4
    v_lshrrev_b32 v5, 1, v6''')
    for r in range(4):
        A(f'''v_cmp_eq_u32 vcc, {r}, v5
        s_nop 1
        v_cndmask_b32 v2, 0, v4, vcc
        v_accvgpr_write_b32 a{A_SEL+r}, v2''')
    A(f'''s_load_dwordx2 s[46:47], s[0:1], {KA['Wq']}
    s_load_dwordx2 s[48:49], s[0:1], {KA['Wk']}
    s_load_dwordx2 s[50:51], s[0:1], {KA['Wv']}
    s_load_dwordx2 s[52:53], s[0:1], {KA['Wo']}
    s_load_dwordx2 s[54:55], s[0:1], {KA['mem0']}
    s_lshr_b32 s15, s{S_TT}, 2
    s_lshl_b32 s19, s{S_G}, 2
    s_add_u32 s15, s15, s19              ; h_p
    s_lshl_b32 s15, s15, 8               ; h_p*256 bytes
    s_and_b32 s19, s{S_TT}, 3
    s_lshl_b32 s19, s19, 6
    s_add_u32 s15, s15, s19              ; + qd*64
    v_lshrrev_b32 v2, 2, v0
    v_lshlrev_b32 v2, 13, v2
    v_and_b32 v3, 3, v0
    v_lshlrev_b32 v3, 4, v3
    v_add3_u32 v2, v2, v3, s15
    v_lshlrev_b32 v3, 4, v0
    v_add_u32 v3, {STAGE}, v3
    s_waitcnt lgkmcnt(0)''')
    for pi, sp in enumerate((46, 48, 50)):
        srd(A, S_T, sp, sp + 1, 640 * 8192)
        A('s_mov_b32 s19, 0')
        for r in range(10):
            A(f'buffer_load_dwordx4 {v(128+pi*40+r*4,4)}, v2, s[{S_T}:{S_T+3}], s19 offen')
            if r < 9:
                A(f's_add_u32 s19, s19, {64*8192}')
    A('v_mov_b32 v125, v3')
    srd(A, S_T, 52, 53, 4096 * 1280)
    A(f'''s_lshl_b32 s15, s{S_G}, 2
    s_add_u32 s15, s15, s{S_W}
    s_mul_i32 s15, s15, {128*1280}
    s_mul_i32 s19, s{S_TT}, 80
    s_add_u32 s15, s15, s19
    s_mul_i32 s45, s{S_W}, {128*96}
    s_add_u32 s45, s45, {STAGE}
    s_mov_b32 s56, 52429''')
    for r in range(10):
        A(f'''v_add_u32 v2, {r*64}, v1
        v_mul_lo_u32 v3, v2, s56
        v_lshrrev_b32 v3, 18, v3
        v_mul_u32_u24 v4, 5, v3
        v_sub_u32 v4, v2, v4
        v_lshlrev_b32 v4, 4, v4
        v_mul_u32_u24 v5, 1280, v3
        v_add3_u32 v5, v5, v4, s15
        buffer_load_dwordx4 {v(64+r*4,4)}, v5, s[{S_T}:{S_T+3}], 0 offen
        v_mul_u32_u24 v5, 96, v3
        v_add3_u32 v{110+r}, v5, v4, s45''')
    A('v_add_u32 v4, 0x10000, v125')
    for pi in range(3):
        A(f's_waitcnt vmcnt({10 + (2-pi)*10})')
        for r in range(10):
            o = pi * 40960 + r * 4096
            A(f'ds_write_b128 v125, {v(128+pi*40+r*4,4)} offset:{o}' if o < 65536 else f'ds_write_b128 v4, {v(128+pi*40+r*4,4)} offset:{o-65536}')
    A('s_waitcnt lgkmcnt(0)')
    A('s_barrier')
    A(f'''v_lshrrev_b32 v2, 2, v6            ; r4
    v_lshlrev_b32 v3, 3, v7                ; 8kg
    v_add_u32 v2, v2, v3
    v_lshlrev_b32 v2, 6, v2
    v_and_b32 v3, 3, v1
    v_lshlrev_b32 v3, 3, v3
    s_and_b32 s15, s{S_W}, 1
    s_lshl_b32 s15, s15, 5
    s_lshr_b32 s19, s{S_W}, 1
    s_mul_i32 s19, s19, 40960
    s_add_u32 s19, s19, s15
    s_add_u32 s19, s19, {STAGE}
    v_add3_u32 v4, v2, v3, s19             ; q/k panel
    s_add_u32 s15, s15, {STAGE + 2*40960}
    v_add3_u32 v5, v2, v3, s15             ; v panel''')
    for ks in range(20):
        for hf in range(2):
            A(f'ds_read_b64_tr_b16 {a(A_WA+ks*4+hf*2,2)}, v4 offset:{ks*2048 + hf*256}')
            A(f'ds_read_b64_tr_b16 {a(A_WV+ks*4+hf*2,2)}, v5 offset:{ks*2048 + hf*256}')
        if ks % 3 == 2:
            A('s_waitcnt lgkmcnt(0)')
    A('s_waitcnt lgkmcnt(0)')
    A('s_barrier')
    A(f'''v_mov_b32 v2, 0
    v_mov_b32 v3, 0
    v_mov_b32 v4, 0
    v_mov_b32 v5, 0
    v_mul_u32_u24 v9, 96, v1
    v_add_u32 v9, s45, v9
    ds_write_b128 v9, v[2:5] offset:80
    ds_write_b128 v9, v[2:5] offset:{80+64*96}
    s_waitcnt vmcnt(0)''')
    for r in range(10):
        A(f'ds_write_b128 v{110+r}, {v(64+r*4,4)}')
    A(f'''s_waitcnt lgkmcnt(0)
    v_lshrrev_b32 v2, 2, v6
    v_lshlrev_b32 v3, 3, v7
    v_add_u32 v2, v2, v3
    v_mul_u32_u24 v2, 96, v2
    v_and_b32 v3, 3, v1
    v_lshlrev_b32 v3, 3, v3
    v_add3_u32 v4, v2, v3, s45''')
    for ks in range(4):
        for tau in range(3):
            for hf in range(2):
                A(f'ds_read_b64_tr_b16 {a(A_WO+(ks*3+tau)*4+hf*2,2)}, v4 offset:{(32*ks+4*hf)*96 + tau*32}')
        A('s_waitcnt lgkmcnt(0)')
    srd(A, S_T, 54, 55, 8 * 1280)
    A(f'''v_mul_u32_u24 v2, 1280, v8
    v_lshrrev_b32 v3, 3, v1
    v_lshlrev_b32 v3, 4, v3
    s_lshl_b32 s15, s{S_W}, 7
    v_add3_u32 v2, v2, v3, s15
    buffer_load_dwordx4 {v(V_E1P,4)}, v2, s[{S_T}:{S_T+3}], 0 offen
    buffer_load_dwordx4 {v(V_E1P+4,4)}, v2, s[{S_T}:{S_T+3}], 0 offen offset:384
    buffer_load_dwordx4 {v(V_E1P+8,4)}, v2, s[{S_T}:{S_T+3}], 0 offen offset:768
    v_mov_b32 v{V_E1Q}, 0
    v_mov_b32 v{V_E1Q+1}, 0
    v_mov_b32 v{V_E1Q+2}, 0
    v_mov_b32 v{V_E1Q+3}, 0
    s_cmp_lg_u32 s{S_W}, 0
    s_cbranch_scc1 {P}_m0
    buffer_load_dwordx4 {v(V_E1Q,4)}, v2, s[{S_T}:{S_T+3}], 0 offen offset:1152
    {P}_m0:''')
    for sg in range(3):
        A(f's_mov_b32 s{S_D0}, {sg}')
        kv_wait(A, S_D0, P + '_abort')
    load_kx(A, '0')
    load_vx(A, '0')
    A(f'''s_mov_b64 exec, s[{M_L32}:{M_L32+1}]
    s_mov_b32 s19, 8192
    buffer_load_dword v{V_PFD}, v{V_PF}, {ws}, s19 offen
    buffer_load_dword v{V_PFD}, v{V_PF}, {ws}, 0 offen
    s_mov_b64 exec, -1''')
    A('s_waitcnt vmcnt(0)')
    vpx_compute(A)
    A(f's_mov_b32 s{S_STEP}, 0')
    A(f's_mov_b32 s{S_KVF}, 0')
    if cfg.get('stamps') or cfg.get('tot'):
        for i in range(20):
            A(f's_mov_b32 s{74+i}, 0')
        A('''s_memtime s[56:57]
        s_waitcnt lgkmcnt(0)
        s_mov_b32 s58, s56
        s_mov_b32 s72, s56
        s_sub_u32 s66, s56, s70''')
    A('s_barrier')
    A(f's_cmp_eq_u32 s{S_MODE}, 0')
    A(f's_cbranch_scc1 {P}_slowloop')
    gen_loop(A, cfg, True, P)
    A(f'{P}_slowloop:')
    gen_loop(A, cfg, False, P)
    A(f'{P}_abort:')
    A(f'''s_load_dwordx2 s[46:47], s[0:1], {KA['dbg']}
    s_waitcnt lgkmcnt(0)
    s_mov_b64 exec, 1
    v_mov_b32 v2, 0
    s_or_b32 s15, s{S_STEP}, 0xdead0000
    v_mov_b32 v3, s15
    global_store_dword v2, v3, s[46:47]
    s_mov_b64 exec, -1''')
    A(f'{P}_done:')
    if cfg.get('stamps') or cfg.get('tot'):
        A('''s_memtime s[56:57]
        s_waitcnt lgkmcnt(0)
        s_sub_u32 s67, s56, s72''')
        A(f'''s_lshl_b32 s15, s{S_G}, 4
        s_add_u32 s15, s15, s{S_TT}
        s_lshl_b32 s15, s15, 2
        s_add_u32 s15, s15, s{S_W}
        s_lshl_b32 s15, s15, 7
        s_add_u32 s15, s15, {STAMP_OFF}
        s_mov_b64 exec, 1
        v_mov_b32 v2, s15
        s_memrealtime s[56:57]
        s_waitcnt lgkmcnt(0)
        s_mov_b32 s88, s68
        s_mov_b32 s89, s56
        v_mov_b32 v40, s66
        v_mov_b32 v41, s67''')
        for i in range(22):
            A(f'v_mov_b32 v{42+i}, s{74+i}')
        for q in range(6):
            A(f'buffer_store_dwordx4 v[{40+4*q}:{43+4*q}], v2, {ws}, 0 offen offset:{16*q}')
    A('s_waitcnt vmcnt(0)')
    A(f's_branch {P}_end')
    A(f'{P}_worker:')
    if cfg.get('workers'):
        cfg['workers'](A, P)
    A(f'{P}_end:')
    A('s_endpgm')
    return kernel_text(name, A.text(), 512, 96, 256)
```

```python
class Asm:
    def __init__(self, prefix='L'):
        self.lines = []
        self.n = 0
        self.prefix = prefix
    def __call__(self, s):
        for l in s.split('\n'):
            l = l.strip()
            if not l:
                continue
            if l.endswith(':') and ' ' not in l:
                self.lines.append(l)
            else:
                self.lines.append('    ' + l)
    def lab(self, base='x'):
        self.n += 1
        return '%s_%s%d' % (self.prefix, base, self.n)
    def nop(self, n):
        while n > 0:
            k = min(n, 16)
            self('s_nop %d' % (k - 1))
            n -= k
    def text(self):
        return '\n'.join(self.lines) + '\n'

def v(i, n=1):
    return 'v%d' % i if n == 1 else 'v[%d:%d]' % (i, i + n - 1)
def a(i, n=1):
    return 'a%d' % i if n == 1 else 'a[%d:%d]' % (i, i + n - 1)
def s(i, n=1):
    return 's%d' % i if n == 1 else 's[%d:%d]' % (i, i + n - 1)

MB = 1 << 20
WS_BYTES = 268435456
KA = dict(u=0, A_re=8, A_im=16, B_re=24, B_im=32, C_re=40, C_im=48, log_dt=56, Dskip=64,
          x=72, mem0=80, Wq=88, Wk=96, Wv=104, Wo=112, seg=120, out=128, dbg=136, ws=144)
KX_OFF = 0
VX_OFF = 16 * MB
QX_OFF = 32 * MB
OX_OFF = 48 * MB
HF_OFF = 64 * MB
HV_OFF = 72 * MB
E1_OFF = 76 * MB
E1_G, E1_S = 4 * 16384, 16384
E2_OFF = 77 * MB
E2_G, E2_S = 4 * 32768, 32768
E3_OFF = 80 * MB
E3_S = 163840
CNT_OFF = 82 * MB
PAR_OFF = CNT_OFF + 4096
STAMP_OFF = 83 * MB
WOF_OFF = 84 * MB

def srd(A, d, base_lo, base_hi, nbytes):
    A(f'''s_mov_b32 s{d}, s{base_lo}
    s_and_b32 s{d+1}, s{base_hi}, 0xffff
    s_mov_b32 s{d+2}, {nbytes}
    s_mov_b32 s{d+3}, 0x20000''')

def kernel_desc(name, nvgpr, nsgpr, accum):
    return f'''.section .rodata,"a"
.p2align 6
.amdhsa_kernel {name}
  .amdhsa_next_free_vgpr {nvgpr}
  .amdhsa_next_free_sgpr {nsgpr}
  .amdhsa_accum_offset {accum}
  .amdhsa_group_segment_fixed_size 0
  .amdhsa_kernarg_size 152
  .amdhsa_user_sgpr_count 2
  .amdhsa_user_sgpr_kernarg_segment_ptr 1
  .amdhsa_system_sgpr_workgroup_id_x 1
.end_amdhsa_kernel
'''
def kernel_text(name, body, nvgpr, nsgpr, accum):
    return f'''.text
.globl {name}
.p2align 8
.type {name},@function
{name}:
{body}
''' + kernel_desc(name, nvgpr, nsgpr, accum)

FLG_OFF = CNT_OFF + 8192
FLG_KV = FLG_OFF
FLG_Q = FLG_OFF + 2048
FLG_O = FLG_OFF + 4096
FLG_WOF = FLG_OFF + 6144
TASKCTR = FLG_OFF + 6272
FLG_H = FLG_OFF + 8192
FLG_BYTES = 8192 + 65536
```

```python
from common import *
XBUF = 45056
S_WS = 4
S_WAVE = 8
S_WSRD = 16
S_XSRD = 20
S_P, S_SEG, S_STEP, S_OUT, S_T0, S_T1, S_XO, S_BUF, S_M0B, S_FLG, S_PREV = 24, 25, 26, 27, 28, 29, 30, 31, 32, 33, 34
V_XO = 8
V_BR = 19
V_ST = 20
V_ACC = 24
V_B = 56
V_P = 80
V_WB = 96
NB = 6
def wreg(panel, ks):
    if panel == 0: return a(ks * 4, 4)
    if ks < 24: return a(160 + ks * 4, 4)
    return v(V_WB + (ks - 24) * 4, 4)
def wreg2(panel, ks, hf):
    if panel == 0: return a(ks * 4 + hf * 2, 2)
    if ks < 24: return a(160 + ks * 4 + hf * 2, 2)
    return v(V_WB + (ks - 24) * 4 + hf * 2, 2)

def wgemm_task(A):
    ws = f's[{S_WS}:{S_WS+3}]'
    lk = A.lab('mk'); lv = A.lab('mv'); lj = A.lab('mj')
    A(f'''s_lshr_b32 s{S_T0}, s{S_P}, 4
    s_cmp_eq_u32 s{S_T0}, 0
    s_cbranch_scc1 {lk}
    s_cmp_eq_u32 s{S_T0}, 1
    s_cbranch_scc1 {lv}
    s_load_dwordx2 s[36:37], s[0:1], {KA['Wq']}
    s_mov_b32 s{S_OUT}, {QX_OFF}
    s_mov_b32 s{S_FLG}, {FLG_Q}
    s_branch {lj}
    {lk}:
    s_load_dwordx2 s[36:37], s[0:1], {KA['Wk']}
    s_mov_b32 s{S_OUT}, {KX_OFF}
    s_mov_b32 s{S_FLG}, {FLG_KV}
    s_branch {lj}
    {lv}:
    s_load_dwordx2 s[36:37], s[0:1], {KA['Wv']}
    s_mov_b32 s{S_OUT}, {VX_OFF}
    s_mov_b32 s{S_FLG}, {FLG_KV}
    {lj}:
    s_load_dwordx2 s[38:39], s[0:1], {KA['x']}
    s_and_b32 s{S_T0}, s{S_P}, 15
    s_lshl_b32 s{S_T0}, s{S_T0}, 1          ; h0
    s_lshr_b32 s{S_T1}, s{S_T0}, 2          ; g
    s_lshl_b32 s{S_T1}, s{S_T1}, 8          ; g*64*4
    s_add_u32 s{S_FLG}, s{S_FLG}, s{S_T1}
    s_waitcnt lgkmcnt(0)''')
    srd(A, S_WSRD, 36, 37, 640 * 8192)
    srd(A, S_XSRD, 38, 39, 2048 * 1280)
    A(f'''s_lshl_b32 s{S_T1}, s{S_T0}, 19
    s_add_u32 s{S_OUT}, s{S_OUT}, s{S_T1}
    s_lshl_b32 s{S_T1}, s{S_WAVE}, 10
    s_add_u32 s{S_OUT}, s{S_OUT}, s{S_T1}
    v_and_b32 v2, 31, v1
    v_lshrrev_b32 v3, 4, v2
    v_lshlrev_b32 v3, 12, v3
    v_and_b32 v4, 15, v1
    v_lshlrev_b32 v4, 4, v4
    v_lshrrev_b32 v5, 5, v1
    v_lshlrev_b32 v6, 8, v5
    v_add3_u32 v{V_ST}, v3, v4, v6
    v_mul_u32_u24 v3, 1296, v2
    v_lshlrev_b32 v5, 4, v5
    v_add_u32 v{V_BR}, v3, v5
    s_mov_b32 s{S_T1}, 51782''')
    for r in range(11):
        A(f'''v_add_u32 v2, {r*256}, v0
        v_mul_lo_u32 v3, v2, s{S_T1}
        v_lshrrev_b32 v3, 22, v3
        v_mul_u32_u24 v4, 81, v3
        v_sub_u32 v4, v2, v4
        v_min_u32 v4, 79, v4
        v_min_u32 v3, 31, v3
        v_mul_u32_u24 v3, 1280, v3
        v_lshlrev_b32 v4, 4, v4
        v_add_u32 v{V_XO+r}, v3, v4''')
    A(f'''v_lshrrev_b32 v2, 5, v0
    v_lshlrev_b32 v2, 13, v2
    v_and_b32 v3, 31, v0
    v_lshlrev_b32 v3, 4, v3
    s_lshl_b32 s{S_T1}, s{S_T0}, 8
    v_add3_u32 v2, v2, v3, s{S_T1}
    s_lshl_b32 s{S_M0B}, s{S_WAVE}, 10
    v_lshrrev_b32 v3, 4, v1
    v_lshrrev_b32 v4, 1, v3
    v_lshlrev_b32 v4, 3, v4
    v_and_b32 v5, 15, v1
    v_lshrrev_b32 v5, 2, v5
    v_add_u32 v4, v4, v5
    v_lshlrev_b32 v4, 9, v4                 ; (8hi + r4)*512
    v_and_b32 v3, 1, v3
    v_lshlrev_b32 v3, 5, v3
    v_and_b32 v5, 3, v1
    v_lshlrev_b32 v5, 3, v5
    v_add3_u32 v4, v4, v3, v5
    s_lshl_b32 s{S_T1}, s{S_WAVE}, 6
    v_add_u32 v4, s{S_T1}, v4
    v_add_u32 v5, 40960, v4''')
    def stage(cc):
        for r in range(10):
            so = (cc * 80 + r * 8) * 8192
            A(f'''s_mov_b32 s{S_T1}, {so}
            s_add_u32 m0, s{S_M0B}, {(cc % 2) * 40960 + r * 4096}
            s_nop 0
            buffer_load_dwordx4 v2, s[{S_WSRD}:{S_WSRD+3}], s{S_T1} offen lds''')
    stage(0)
    for cc in range(8):
        if cc + 1 < 8:
            stage(cc + 1)
            A('s_waitcnt vmcnt(10)')
        else:
            A('s_waitcnt vmcnt(0)')
        A('s_barrier')
        ar = 'v4' if cc % 2 == 0 else 'v5'
        n = 0
        for ks in range(5):
            for panel in range(2):
                for hf in range(2):
                    A(f'ds_read_b64_tr_b16 {wreg2(panel, cc*5+ks, hf)}, {ar} offset:{(16*ks+4*hf)*512 + panel*256}')
                    n += 1
            if ks % 3 == 2: A('s_waitcnt lgkmcnt(0)')
        A('s_waitcnt lgkmcnt(0)')
        A('s_barrier')
    def issue_x(bufreg):
        for r in range(11):
            A(f'''s_add_u32 m0, s{bufreg}, {r * 4096}
            s_nop 0
            buffer_load_dwordx4 v{V_XO+r}, s[{S_XSRD}:{S_XSRD+3}], s{S_XO} offen lds''')
    def signal(segreg):
        l = A.lab('sg')
        A(f'''s_cmp_lg_u32 s{S_WAVE}, 0
        s_cbranch_scc1 {l}
        s_lshl_b32 s{S_T1}, s{segreg}, 2
        s_add_u32 s{S_T1}, s{S_T1}, s{S_FLG}
        v_mov_b32 v2, s{S_T1}
        v_mov_b32 v3, 1
        s_mov_b64 exec, 1
        buffer_atomic_add v3, v2, {ws}, 0 offen sc1
        s_mov_b64 exec, -1
        {l}:''')
    A(f'''s_mul_i32 s{S_XO}, s{S_SEG}, 40960
    s_mov_b32 s{S_BUF}, s{S_M0B}
    s_mov_b32 s{S_PREV}, -1''')
    issue_x(S_BUF)
    top = A.lab('top'); nonext = A.lab('nonext'); nosig = A.lab('nosig')
    A(f'{top}:')
    A('s_waitcnt vmcnt(0)')
    A('s_barrier')
    A(f's_cmp_eq_u32 s{S_PREV}, -1')
    A(f's_cbranch_scc1 {nosig}')
    signal(S_PREV)
    A(f'{nosig}:')
    A(f'''s_sub_u32 s{S_T0}, s{S_BUF}, s{S_M0B}
    v_add_u32 v7, s{S_T0}, v{V_BR}
    s_xor_b32 s{S_T0}, s{S_T0}, {XBUF}
    s_add_u32 s{S_BUF}, s{S_T0}, s{S_M0B}
    s_add_u32 s{S_T0}, s{S_SEG}, s{S_STEP}
    s_cmp_ge_u32 s{S_T0}, 64
    s_cbranch_scc1 {nonext}
    s_mul_i32 s{S_XO}, s{S_T0}, 40960''')
    issue_x(S_BUF)
    A(f'{nonext}:')
    for k in range(NB - 1):
        A(f'ds_read_b128 {v(V_B + k*4, 4)}, v7 offset:{k*32}')
    for ks in range(40):
        nxt = ks + NB - 1
        if nxt < 40:
            A(f'ds_read_b128 {v(V_B + (nxt % NB)*4, 4)}, v7 offset:{nxt*32}')
            A(f's_waitcnt lgkmcnt({NB-1})')
        else:
            A(f's_waitcnt lgkmcnt({39 - ks})')
        for panel in range(2):
            acc = v(V_ACC + panel * 16, 16)
            A(f'v_mfma_f32_32x32x16_bf16 {acc}, {wreg(panel, ks)}, {v(V_B + (ks % NB)*4, 4)}, {"0" if ks == 0 else acc}')
    A.nop(12)
    A(f'''s_lshl_b32 s{S_T0}, s{S_SEG}, 13
    s_add_u32 s{S_T0}, s{S_T0}, s{S_OUT}
    s_add_u32 s{S_T1}, s{S_T0}, {1 << 19}''')
    for panel in range(2):
        ac = V_ACC + panel * 16
        pp = V_P if panel == 0 else V_B
        for q in range(4):
            A(f'v_cvt_pk_bf16_f32 v{pp+2*q}, v{ac+4*q}, v{ac+4*q+1}')
            A(f'v_cvt_pk_bf16_f32 v{pp+2*q+1}, v{ac+4*q+2}, v{ac+4*q+3}')
        A('s_nop 1')
        for m in range(2):
            A(f'v_permlane32_swap_b32 v{pp+4*m}, v{pp+4*m+2}')
            A(f'v_permlane32_swap_b32 v{pp+4*m+1}, v{pp+4*m+3}')
        so = S_T0 if panel == 0 else S_T1
        A('s_nop 0')
        A(f'buffer_store_dwordx4 {v(pp,4)}, v{V_ST}, {ws}, s{so} offen sc1')
        A(f'buffer_store_dwordx4 {v(pp+4,4)}, v{V_ST}, {ws}, s{so} offen offset:512 sc1')
    A(f'''s_mov_b32 s{S_PREV}, s{S_SEG}
    s_add_u32 s{S_SEG}, s{S_SEG}, s{S_STEP}
    s_cmp_lt_u32 s{S_SEG}, 64
    s_cbranch_scc1 {top}
    s_waitcnt vmcnt(0)
    s_barrier''')
    signal(S_PREV)
```

```python
import sys
sys.path.insert(0,'gen')
from common import *
import chain, attn, ssm, wgemm

MAIN = 'concat_heads__ssm_conv_s4__memory_aug_recurrent_mem_tr__prompt_kernel'
TASK_LDS = 143296

N_Q, N_WOF, N_SSM = 128, 32, 160
T_Q0 = 0
T_WOF0 = T_Q0 + N_Q
T_SSM0 = T_WOF0 + N_WOF
T_AO0 = T_SSM0 + N_SSM
AO = []
for tb in range(32):
    for sgi in range(2):
        for hg in range(8):
            AO.append(('att', 2 * tb + sgi, hg))
    if tb >= 1:
        for db in range(8):
            AO.append(('out', tb - 1, db))
for db in range(8):
    AO.append(('out', 31, db))
N_TASKS = T_AO0 + len(AO)

def gen_prep(cfg, name='prep_kernel'):
    P = 'PR'
    A = Asm(P)
    ws = 's[4:7]'
    NW = 32
    A(f'''s_cmp_ge_u32 s2, {NW}
    s_cbranch_scc1 {P}_end
    s_load_dwordx2 s[26:27], s[0:1], {KA['ws']}
    v_lshrrev_b32 v2, 6, v0
    s_nop 0
    v_readfirstlane_b32 s8, v2
    s_waitcnt lgkmcnt(0)''')
    srd(A, 4, 26, 27, WS_BYTES)
    A('''v_mov_b32 v4, -1
    v_mov_b32 v5, -1
    v_mov_b32 v6, -1
    v_mov_b32 v7, -1
    v_lshlrev_b32 v2, 4, v0''')
    for base, nbytes in ((E1_OFF, 512 * 1024), (E2_OFF, 1 << 20), (E3_OFF, 672 * 1024)):
        rounds = nbytes // 4096
        lp = A.lab('clr')
        A(f'''s_lshl_b32 s26, s2, 12
        s_add_u32 s26, s26, {base}
        s_mov_b32 s29, s2
        {lp}:
        buffer_store_dwordx4 v[4:7], v2, {ws}, s26 offen
        s_add_u32 s26, s26, {NW*4096}
        s_add_u32 s29, s29, {NW}
        s_cmp_lt_u32 s29, {rounds}
        s_cbranch_scc1 {lp}''')
    l1 = A.lab('nz'); lz = A.lab('z')
    NCH = (8192 + FLG_BYTES) // 4096
    assert NCH <= NW
    A(f'''s_cmp_ge_u32 s2, {NCH}
    s_cbranch_scc1 {l1}
    s_cmp_eq_u32 s2, 1
    s_cbranch_scc1 {l1}
    v_mov_b32 v4, 0
    v_mov_b32 v5, 0
    v_mov_b32 v6, 0
    v_mov_b32 v7, 0
    s_lshl_b32 s26, s2, 12
    s_add_u32 s26, s26, {CNT_OFF}
    buffer_store_dwordx4 v[4:7], v2, {ws}, s26 offen
    {l1}:
    s_cmp_lg_u32 s2, 1
    s_cbranch_scc1 {P}_end
    s_cmp_lg_u32 s8, 0
    s_cbranch_scc1 {P}_end
    s_getreg_b32 s29, hwreg(HW_REG_XCC_ID)
    s_and_b32 s29, s29, 7
    s_mov_b64 exec, 1
    v_mov_b32 v4, 0
    s_mov_b32 s30, 0
    s_mov_b32 s31, 0''')
    CAL = E3_OFF + (1 << 20)
    NS = 4
    for k in range(NS):
        for c in range(2):
            A(f'''v_mov_b32 v2, {CAL + k*16384 + c*8192 + k*256}
            buffer_store_dword v4, v2, {ws}, 0 offen sc1''')
    A('s_waitcnt vmcnt(0)')
    for k in range(NS):
        for c in range(2):
            A(f'''v_mov_b32 v2, {CAL + k*16384 + c*8192 + k*256}
            s_memtime s[32:33]
            s_waitcnt lgkmcnt(0)
            buffer_load_dword v5, v2, {ws}, 0 offen sc1
            s_waitcnt vmcnt(0)
            s_memtime s[34:35]
            s_waitcnt lgkmcnt(0)
            s_sub_u32 s34, s34, s32
            s_add_u32 s{30+c}, s{30+c}, s34''')
    A(f'''s_cmp_lt_u32 s31, s30
    s_cselect_b32 s26, 1, 0
    s_lshr_b32 s29, s29, 2
    s_xor_b32 s26, s26, s29
    v_mov_b32 v4, s26
    v_mov_b32 v2, {PAR_OFF}
    buffer_store_dword v4, v2, {ws}, 0 offen
    s_waitcnt vmcnt(0)''')
    A(f'{P}_end:')
    A('s_endpgm')
    return kernel_text(name, A.text(), 16, 48, 16)

LOG = False
TLOG = STAMP_OFF + 262144
def tlog(A, idx_expr_sreg, slot):
    if not LOG: return
    l = A.lab('tl')
    A(f'''s_cmp_lg_u32 s8, 0
    s_cbranch_scc1 {l}
    s_memrealtime s[46:47]
    s_waitcnt lgkmcnt(0)
    s_lshl_b32 s47, s{idx_expr_sreg}, 3
    s_add_u32 s47, s47, {TLOG + slot*4}
    v_mov_b32 v2, s47
    v_mov_b32 v3, s46
    s_mov_b64 exec, 1
    buffer_store_dword v3, v2, s[4:7], 0 offen
    s_mov_b64 exec, -1
    {l}:''')

def workers(A, P):
    top = A.lab('wtop'); nw = A.lab('wnw')
    lq = A.lab('wq'); lw = A.lab('wwof'); ls = A.lab('wssm'); lao = A.lab('wao')
    A(f'''s_mov_b32 s8, s14
    s_sub_u32 s15, s15, 128
    s_lshr_b32 s{wgemm.S_P}, s15, 2
    s_and_b32 s{wgemm.S_SEG}, s15, 3
    s_mov_b32 s{wgemm.S_STEP}, 4''')
    A('s_add_u32 s48, s15, 1200')
    tlog(A, 48, 0)
    lg = A.lab('wgemm')
    A(f'{lg}:')
    wgemm.wgemm_task(A)
    A(f'{top}:')
    tlog(A, 48, 1)
    A(f'''s_cmp_lg_u32 s8, 0
    s_cbranch_scc1 {nw}
    s_mov_b64 exec, 1
    v_mov_b32 v2, {TASKCTR}
    v_mov_b32 v3, 1
    buffer_atomic_add v3, v2, s[4:7], 0 offen sc0
    s_waitcnt vmcnt(0)
    v_mov_b32 v2, {TASK_LDS}
    ds_write_b32 v2, v3
    s_waitcnt lgkmcnt(0)
    s_mov_b64 exec, -1
    {nw}:
    s_barrier
    v_mov_b32 v2, {TASK_LDS}
    ds_read_b32 v3, v2
    s_waitcnt lgkmcnt(0)
    s_nop 0
    v_readfirstlane_b32 s13, v3
    s_nop 3
    s_barrier
    s_cmp_ge_u32 s13, {N_TASKS}
    s_cbranch_scc1 {P}_end
    s_mov_b32 s48, s13''')
    tlog(A, 48, 0)
    A(f'''    s_cmp_ge_u32 s13, {T_AO0}
    s_cbranch_scc1 {lao}
    s_cmp_ge_u32 s13, {T_SSM0}
    s_cbranch_scc1 {ls}
    s_cmp_ge_u32 s13, {T_WOF0}
    s_cbranch_scc1 {lw}
    s_lshr_b32 s{wgemm.S_P}, s13, 3
    s_add_u32 s{wgemm.S_P}, s{wgemm.S_P}, 32
    s_and_b32 s{wgemm.S_SEG}, s13, 7
    s_mov_b32 s{wgemm.S_STEP}, 8
    s_branch {lg}''')
    A(f'{lw}:')
    A(f's_sub_u32 s10, s13, {T_WOF0}')
    A('s_lshl_b32 s10, s10, 2')
    for q in range(4):
        A(f's_add_u32 s9, s10, {q}')
        attn.gen_wof_body(A, 9, P, sc1=True)
    A(f's_mov_b32 s12, {FLG_WOF}')
    attn.signal(A, 12)
    A(f's_branch {top}')
    A(f'{ls}:')
    A(f's_sub_u32 s13, s13, {T_SSM0}')
    ssm.ssm_task(A, 13)
    A(f's_branch {top}')
    A(f'{lao}:')
    lo = A.lab('wout'); l2 = A.lab('wao2'); latt = A.lab('watt')
    A(f'''s_sub_u32 s13, s13, {T_AO0}
    s_cmp_lt_u32 s13, 16
    s_cbranch_scc0 {l2}
    s_mov_b32 s16, 0                    ; tb
    s_mov_b32 s17, s13                  ; within
    s_branch {latt}
    {l2}:
    s_sub_u32 s13, s13, 16
    s_mul_hi_u32 s16, s13, {(2**32 + 23)//24}
    s_mul_i32 s17, s16, 24
    s_sub_u32 s17, s13, s17             ; within 0..23
    s_add_u32 s16, s16, 1               ; tb (1..32)
    s_cmp_ge_u32 s16, 32
    s_cbranch_scc1 {lo}_tail
    s_cmp_lt_u32 s17, 16
    s_cbranch_scc1 {latt}
    s_sub_u32 s10, s17, 16              ; db
    s_sub_u32 s9, s16, 1
    s_branch {lo}
    {lo}_tail:
    s_mov_b32 s10, s17
    s_mov_b32 s9, 31
    {lo}:''')
    attn.wait_flags(A, f'''s_lshl_b32 s16, s9, 6
    s_add_u32 s16, s16, {FLG_O}
    v_mov_b32 v2, s16
    v_mov_b32 v4, {FLG_WOF}
    v_cmp_eq_u32 vcc, 1, v1
    s_nop 1
    v_cndmask_b32 v2, v2, v4, vcc''', 2, '''v_mov_b32 v3, 16
    v_mov_b32 v4, 32
    v_cndmask_b32 v3, v3, v4, vcc''')
    attn.outp_task(A)
    A(f's_branch {top}')
    A(f'{latt}:')
    A(f'''s_lshl_b32 s9, s16, 1
    s_lshr_b32 s18, s17, 3
    s_add_u32 s9, s9, s18               ; seg
    s_and_b32 s17, s17, 7               ; hg
    s_lshl_b32 s10, s17, 2
    s_add_u32 s10, s10, s8              ; h
    s_lshl_b32 s44, s16, 6
    s_add_u32 s44, s44, {FLG_O}''')
    attn.wait_flags(A, f'''s_lshl_b32 s18, s17, 8
    s_lshl_b32 s19, s9, 2
    s_add_u32 s18, s18, s19
    s_lshl_b32 s19, s9, 5
    s_add_u32 s19, s19, s10
    s_lshl_b32 s19, s19, 5
    s_add_u32 s19, s19, {FLG_H - 8}
    v_lshlrev_b32 v2, 2, v1
    v_add_u32 v2, s19, v2
    s_add_u32 s19, s18, {FLG_KV}
    v_mov_b32 v4, s19
    v_cmp_eq_u32 vcc, 1, v1
    s_nop 1
    v_cndmask_b32 v2, v2, v4, vcc
    s_add_u32 s19, s18, {FLG_Q}
    v_mov_b32 v4, s19
    v_cmp_eq_u32 s[20:21], 0, v1
    s_nop 1
    v_cndmask_b32 v2, v2, v4, s[20:21]''', 10, '''v_mov_b32 v3, 1
    v_mov_b32 v4, 4
    v_cndmask_b32 v3, v3, v4, vcc
    v_mov_b32 v4, 2
    v_cndmask_b32 v3, v3, v4, s[20:21]''')
    attn.attn_consts(A)
    attn.attn_task(A, sc1=True)
    A('s_waitcnt vmcnt(0)')
    A('s_barrier')
    attn.signal(A, 44)
    A(f's_branch {top}')

def build(cfg):
    hdr = open('concat_heads__ssm_conv_s4__memory_aug_recurrent_mem_tr__prompt.s.ref').read().split('\n')
    head = []
    for l in hdr:
        if l.startswith('; @launch'):
            break
        head.append(l)
    launches = [('prep_kernel', 32, 256, 0), (MAIN, 256, 256, 143360)]
    t = '\n'.join(head) + '\n'
    for n, g, b, l in launches:
        t += f'; @launch kernel={n} grid=({g},1,1) block=({b},1,1) lds={l}\n'
    t += '.amdgcn_target "amdgcn-amd-amdhsa--gfx950"\n'
    ccfg = dict(cfg.get('chain', {})); ccfg['workers'] = workers
    t += gen_prep({})
    t += chain.gen_chain(ccfg, name=MAIN)
    return t

if __name__ == '__main__':
    import json
    out = sys.argv[1] if len(sys.argv) > 1 else 'concat_heads__ssm_conv_s4__memory_aug_recurrent_mem_tr__prompt.s'
    ccfg = json.loads(sys.argv[2]) if len(sys.argv) > 2 else {'e1_sleep': 2, 'e2_sleep': 2}
    LOG = bool(ccfg.get('steplog'))
    t = build({'chain': ccfg})
    open(out, 'w').write(t)
    print('written', out, len(t), 'tasks', N_TASKS)
```

```python
from common import *
import struct

def mfma32(A, d, x, y, c):
    A(f'v_mfma_f32_16x16x32_bf16 {d}, {x}, {y}, {c}')
def mfma16(A, d, x, y, c):
    A(f'v_mfma_f32_16x16x16_bf16 {d}, {x}, {y}, {c}')

S_WS = 4
S_WAVE, S_SEG, S_H, S_B, S_C, S_T = 8, 9, 10, 11, 12, 13
M_L32 = 14
V_L16 = 2
V_HVO = 3
V_ST = 4
V_HFO = 5
V_Q, V_K, V_V, V_HF, V_HV = 16, 48, 80, 112, 128
V_SEL = 144
V_ONE = 152
V_CM = 156
V_DM = 160
V_T = 164
V_PX = 176
V_PM = 184
V_DEN = 188
V_CFX = 196
V_CFM = 228
V_O = 48
V_TMP = 244

def wait_flags(A, setup, nl, thr_setup, abort=None, ra=2, rt=3, rv=9, sleep=16):
    lp = A.lab('wf'); ok = A.lab('wfok')
    A(setup)
    A(thr_setup)
    A(f'''s_mov_b64 exec, {(1 << nl) - 1}
    s_mov_b32 s40, 0
    {lp}:
    buffer_load_dword v{rv}, v{ra}, s[4:7], 0 offen sc1
    s_waitcnt vmcnt(0)
    v_cmp_lt_u32 vcc, v{rv}, v{rt}
    s_cbranch_vccz {ok}
    s_sleep {sleep}
    s_add_u32 s40, s40, 1
    s_cmp_lt_u32 s40, {1 << 20}
    s_cbranch_scc1 {lp}
    {ok}:
    s_mov_b64 exec, -1''')

def signal(A, addr_sreg, wave_sreg=8):
    l = A.lab('sig')
    A(f'''s_cmp_lg_u32 s{wave_sreg}, 0
    s_cbranch_scc1 {l}
    v_mov_b32 v2, s{addr_sreg}
    v_mov_b32 v3, 1
    s_mov_b64 exec, 1
    buffer_atomic_add v3, v2, s[4:7], 0 offen sc1
    s_mov_b64 exec, -1
    {l}:''')

def attn_task(A, sc1=False, mid=None):
    ws = f's[{S_WS}:{S_WS+3}]'
    A(f'''s_lshl_b32 s{S_B}, s{S_H}, 6
    s_add_u32 s{S_B}, s{S_B}, s{S_SEG}
    s_lshl_b32 s{S_B}, s{S_B}, 13
    s_add_u32 s16, s{S_B}, {QX_OFF}
    s_add_u32 s17, s16, 4096
    s_add_u32 s18, s{S_B}, {KX_OFF}
    s_add_u32 s19, s18, 4096
    s_add_u32 s20, s{S_B}, {VX_OFF}
    s_add_u32 s21, s20, 4096
    s_lshl_b32 s22, s{S_SEG}, 5
    s_add_u32 s22, s22, s{S_H}            ; seg*32+h
    s_lshl_b32 s23, s22, 12
    s_add_u32 s23, s23, {HF_OFF}
    s_lshl_b32 s24, s22, 11
    s_add_u32 s24, s24, {HV_OFF}
    s_add_u32 s25, s{S_B}, {OX_OFF}''')
    for kt in range(2):
        for ks in range(4):
            A(f'buffer_load_dwordx4 {v(V_Q+(kt*4+ks)*4,4)}, v{V_L16}, {ws}, s{16+kt} offen offset:{ks*1024}')
    for kt in range(2):
        for ks in range(4):
            A(f'buffer_load_dwordx4 {v(V_K+(kt*4+ks)*4,4)}, v{V_L16}, {ws}, s{18+kt} offen offset:{ks*1024}')
    for kt in range(2):
        for ks in range(4):
            A(f'buffer_load_dwordx4 {v(V_V+(kt*4+ks)*4,4)}, v{V_L16}, {ws}, s{20+kt} offen offset:{ks*1024}')
    if mid: mid(A)
    for ks in range(4):
        A(f'buffer_load_dwordx4 {v(V_HF+ks*4,4)}, v{V_HFO}, {ws}, s23 offen offset:{ks*1024}')
    for ks in range(4):
        A(f'buffer_load_dwordx4 {v(V_HV+ks*4,4)}, v{V_HVO}, {ws}, s24 offen offset:{ks*512}')
    A('s_waitcnt vmcnt(4)')
    for qt in range(2):
        Tm, T0, T1 = V_T, V_T + 4, V_T + 8
        for ks in range(4):
            q = v(V_Q + (qt * 4 + ks) * 4, 4)
            mfma32(A, v(Tm, 4), v(V_HF + ks * 4, 4), q, v(V_CM, 4) if ks == 0 else v(Tm, 4))
            mfma32(A, v(T0, 4), v(V_K + ks * 4, 4), q, (v(V_DM, 4) if qt == 0 else '0') if ks == 0 else v(T0, 4))
            if qt == 1:
                mfma32(A, v(T1, 4), v(V_K + (4 + ks) * 4, 4), q, v(V_DM, 4) if ks == 0 else v(T1, 4))
        A.nop(8)
        regs = list(range(Tm, Tm + 8)) + (list(range(T1, T1 + 4)) if qt == 1 else [])
        t = V_TMP
        A(f'v_max3_f32 v{t}, v{regs[0]}, v{regs[1]}, v{regs[2]}')
        rest = regs[3:]
        while rest:
            if len(rest) >= 2:
                A(f'v_max3_f32 v{t}, v{t}, v{rest[0]}, v{rest[1]}'); rest = rest[2:]
            else:
                A(f'v_max_f32 v{t}, v{t}, v{rest[0]}'); rest = rest[1:]
        A(f'''v_mov_b32 v{t+1}, v{t}
        s_nop 1
        v_permlane16_swap_b32 v{t}, v{t+1}
        v_max_f32 v{t}, v{t}, v{t+1}
        v_mov_b32 v{t+1}, v{t}
        s_nop 1
        v_permlane32_swap_b32 v{t}, v{t+1}
        v_max_f32 v{t}, v{t}, v{t+1}
        v_mul_f32 v{t}, s{S_C}, v{t}''')
        for r in regs:
            A(f'v_fma_f32 v{r}, v{r}, s{S_C}, -v{t}')
        for r in regs:
            A(f'v_exp_f32 v{r}, v{r}')
        A('s_nop 0')
        px = V_PX + qt * 4; pm = V_PM + qt * 2
        A(f'v_cvt_pk_bf16_f32 v{px}, v{T0}, v{T0+1}')
        A(f'v_cvt_pk_bf16_f32 v{px+1}, v{T0+2}, v{T0+3}')
        if qt == 1:
            A(f'v_cvt_pk_bf16_f32 v{px+2}, v{T1}, v{T1+1}')
            A(f'v_cvt_pk_bf16_f32 v{px+3}, v{T1+2}, v{T1+3}')
        else:
            A(f'v_mov_b32 v{px+2}, 0')
            A(f'v_mov_b32 v{px+3}, 0')
        A(f'v_cvt_pk_bf16_f32 v{pm}, v{Tm}, v{Tm+1}')
        A(f'v_cvt_pk_bf16_f32 v{pm+1}, v{Tm+2}, v{Tm+3}')
        A.nop(2)
        mfma32(A, v(V_DEN + qt * 4, 4), v(V_ONE, 4), v(px, 4), '0')
    A.nop(8)
    for qt in range(2):
        mfma16(A, v(V_DEN + qt * 4, 4), v(V_ONE, 2), v(V_PM + qt * 2, 2), v(V_DEN + qt * 4, 4))
    A('s_waitcnt vmcnt(0)')
    TA = V_Q
    for et2 in range(0, 8, 2):
        for j in range(2):
            et = et2 + j; ks = et >> 1; half = et & 1
            base = TA + ((et2 // 2) % 2) * 24 + j * 12 if False else TA + (j * 12) + ((et2 // 2) % 2) * 0
            mfma32(A, v(TA + j * 12, 4), v(V_V + ks * 4, 4), v(V_SEL + half * 4, 4), '0')
            mfma32(A, v(TA + j * 12 + 4, 4), v(V_V + (4 + ks) * 4, 4), v(V_SEL + half * 4, 4), '0')
            mfma32(A, v(TA + j * 12 + 8, 4), v(V_HV + ks * 4, 4), v(V_SEL + half * 4, 4), '0')
        A.nop(8)
        for j in range(2):
            et = et2 + j; b = TA + j * 12
            A(f'v_cvt_pk_bf16_f32 v{V_CFX+et*4}, v{b}, v{b+1}')
            A(f'v_cvt_pk_bf16_f32 v{V_CFX+et*4+1}, v{b+2}, v{b+3}')
            A(f'v_cvt_pk_bf16_f32 v{V_CFX+et*4+2}, v{b+4}, v{b+5}')
            A(f'v_cvt_pk_bf16_f32 v{V_CFX+et*4+3}, v{b+6}, v{b+7}')
            A(f'v_cvt_pk_bf16_f32 v{V_CFM+et*2}, v{b+8}, v{b+9}')
            A(f'v_cvt_pk_bf16_f32 v{V_CFM+et*2+1}, v{b+10}, v{b+11}')
        A.nop(3)
    for qt in range(2):
        for et in range(8):
            mfma32(A, v(V_O + et * 4, 4), v(V_CFX + et * 4, 4), v(V_PX + qt * 4, 4), '0')
        for et in range(8):
            mfma16(A, v(V_O + et * 4, 4), v(V_CFM + et * 2, 2), v(V_PM + qt * 2, 2), v(V_O + et * 4, 4))
        A(f'v_rcp_f32 v{V_TMP}, v{V_DEN + qt*4}')
        A.nop(8)
        for et in range(8):
            b = V_O + et * 4
            for r in range(4):
                A(f'v_mul_f32 v{b+r}, v{V_TMP}, v{b+r}')
            A(f'v_cvt_pk_bf16_f32 v{V_TMP+2+(et%2)*2}, v{b}, v{b+1}')
            A(f'v_cvt_pk_bf16_f32 v{V_TMP+3+(et%2)*2}, v{b+2}, v{b+3}')
            off = (et >> 1) * 1024 + (et & 1) * 512
            so = 's25' if qt == 0 else 's26'
            A(f'buffer_store_dwordx2 v[{V_TMP+2+(et%2)*2}:{V_TMP+3+(et%2)*2}], v{V_ST}, {ws}, {so} offen offset:{off}' + (' sc1' if sc1 else ''))
        if qt == 0:
            A('s_add_u32 s26, s25, 4096')
            A.nop(4)

def attn_consts(A):
    A(f'''v_lshlrev_b32 v{V_L16}, 4, v1
    v_and_b32 v6, 15, v1
    v_lshrrev_b32 v7, 4, v1
    v_and_b32 v8, 7, v1
    v_lshlrev_b32 v9, 7, v7
    v_lshlrev_b32 v8, 4, v8
    v_add_u32 v{V_HVO}, v9, v8
    v_lshlrev_b32 v9, 8, v7
    v_add3_u32 v{V_HFO}, v9, v8, 64
    v_add_u32 v{V_HFO}, 64, v{V_HFO}
    v_lshrrev_b32 v9, 1, v7
    v_lshlrev_b32 v9, 8, v9
    v_lshlrev_b32 v10, 4, v6
    v_and_b32 v11, 1, v7
    v_lshlrev_b32 v11, 3, v11
    v_add3_u32 v{V_ST}, v9, v10, v11
    v_cmp_gt_u32 vcc, 32, v1
    s_mov_b64 s[{M_L32}:{M_L32+1}], vcc
    v_mov_b32 v9, 0xff800000
    v_mov_b32 v10, 0
    v_cndmask_b32 v{V_CM}, v10, v9, s[{M_L32}:{M_L32+1}]
    v_mov_b32 v{V_CM+1}, v{V_CM}
    v_mov_b32 v{V_CM+2}, v{V_CM}
    v_mov_b32 v{V_CM+3}, v{V_CM}
    v_lshlrev_b32 v11, 2, v7''')
    for r in range(4):
        A(f'''v_add_u32 v12, {r}, v11
        v_cmp_le_u32 vcc, v12, v6
        s_nop 1
        v_cndmask_b32 v{V_DM+r}, v9, v10, vcc''')
    for r in range(4):
        A(f'v_mov_b32 v{V_ONE+r}, 0x3f803f80')
    A(f'''v_and_b32 v9, 1, v6
    v_lshlrev_b32 v9, 4, v9
    v_mov_b32 v10, 0x3f80
    v_lshlrev_b32 v10, v9, v10
    v_and_b32 v9, 7, v6
    v_lshrrev_b32 v9, 1, v9
    v_lshrrev_b32 v11, 3, v6            ; e'>>3''')
    for half in range(2):
        A(f'''v_add_u32 v12, {2*half}, v11
        v_cmp_eq_u32 s[26:27], v12, v7''')
        for r in range(4):
            A(f'''v_cmp_eq_u32 vcc, {r}, v9
            s_and_b64 vcc, vcc, s[26:27]
            s_nop 1
            v_cndmask_b32 v{V_SEL+half*4+r}, 0, v10, vcc''')
    c = struct.unpack('<I', struct.pack('<f', 128 ** -0.5 * 1.4426950408889634))[0]
    A(f's_mov_b32 s{S_C}, {hex(c)}')

def gen_attn(cfg, name='attn_kernel'):
    P = 'AT'
    A = Asm(P)
    A(f'''s_cmp_ge_u32 s2, 512
    s_cbranch_scc1 {P}_end
    s_load_dwordx2 s[26:27], s[0:1], {KA['ws']}
    v_lshrrev_b32 v2, 6, v0
    v_and_b32 v1, 63, v0
    s_nop 0
    v_readfirstlane_b32 s{S_WAVE}, v2
    s_waitcnt lgkmcnt(0)''')
    srd(A, S_WS, 26, 27, WS_BYTES)
    attn_consts(A)
    A(f'''s_lshr_b32 s{S_SEG}, s2, 3
    s_and_b32 s{S_H}, s2, 7
    s_lshl_b32 s{S_H}, s{S_H}, 2
    s_add_u32 s{S_H}, s{S_H}, s{S_WAVE}''')
    attn_task(A)
    A(f'{P}_end:')
    A('s_endpgm')
    return kernel_text(name, A.text(), 256, 48, 256)

def gen_wof_body(A, kk_sreg, P, sc1=False):
    ws = f's[{S_WS}:{S_WS+3}]'
    A(f's_load_dwordx2 s[26:27], s[0:1], {KA["Wo"]}')
    A('s_waitcnt lgkmcnt(0)')
    srd(A, 16, 26, 27, 4096 * 1280)
    A(f'''s_mul_i32 s20, s{kk_sreg}, 40960
    v_lshlrev_b32 v2, 4, v0
    s_lshl_b32 s21, s{S_WAVE}, 10''')
    for r in range(10):
        A(f'''s_add_u32 m0, s21, {r*4096}
        s_add_u32 s22, s20, {r*4096}
        s_nop 0
        buffer_load_dwordx4 v2, s[16:19], s22 offen lds''')
    A('s_waitcnt vmcnt(0)')
    A('s_barrier')
    A(f'''v_and_b32 v3, 15, v1
    v_lshrrev_b32 v3, 2, v3
    v_lshrrev_b32 v4, 4, v1
    v_lshlrev_b32 v4, 3, v4
    v_add_u32 v3, v3, v4
    v_mul_u32_u24 v3, 1280, v3
    v_and_b32 v4, 3, v1
    v_lshlrev_b32 v4, 3, v4
    s_mul_i32 s21, s{S_WAVE}, 320
    v_add3_u32 v3, v3, v4, s21
    v_lshlrev_b32 v5, 4, v1
    s_mul_i32 s22, s{S_WAVE}, {10*128*1024}
    s_lshl_b32 s23, s{kk_sreg}, 10
    s_add_u32 s22, s22, s23
    s_add_u32 s22, s22, {WOF_OFF}''')
    for dt in range(10):
        A(f'ds_read_b64_tr_b16 v[{8+dt*4}:{9+dt*4}], v3 offset:{dt*32}')
        A(f'ds_read_b64_tr_b16 v[{10+dt*4}:{11+dt*4}], v3 offset:{dt*32 + 4*1280}')
    A('s_waitcnt lgkmcnt(0)')
    for dt in range(10):
        A(f'buffer_store_dwordx4 v[{8+dt*4}:{11+dt*4}], v5, {ws}, s22 offen' + (' sc1' if sc1 else ''))
        A(f's_add_u32 s22, s22, {128*1024}')
    if sc1: A('s_waitcnt vmcnt(0)')
    A('s_barrier')

def gen_wof(cfg, name='wof_kernel'):
    P = 'WF'
    A = Asm(P)
    A(f'''s_cmp_ge_u32 s2, 128
    s_cbranch_scc1 {P}_end
    s_load_dwordx2 s[26:27], s[0:1], {KA['ws']}
    v_lshrrev_b32 v2, 6, v0
    v_and_b32 v1, 63, v0
    s_nop 0
    v_readfirstlane_b32 s{S_WAVE}, v2
    s_waitcnt lgkmcnt(0)''')
    srd(A, S_WS, 26, 27, WS_BYTES)
    A('s_mov_b32 s9, s2')
    gen_wof_body(A, 9, P)
    A(f'{P}_end:')
    A('s_endpgm')
    return kernel_text(name, A.text(), 64, 48, 64)

def outp_task(A):
    ws = f's[{S_WS}:{S_WS+3}]'
    V_A, V_B2, V_AC = 16, 56, 96
    A(f'''s_load_dwordx2 s[28:29], s[0:1], {KA['out']}
    s_waitcnt lgkmcnt(0)''')
    srd(A, 20, 28, 29, 2048 * 2560)
    A(f'''v_lshlrev_b32 v2, 4, v1
    s_mul_i32 s11, s10, {5*128*1024}
    s_lshl_b32 s12, s{S_WAVE}, 15
    s_add_u32 s11, s11, s12
    s_add_u32 s11, s11, {WOF_OFF}
    s_lshl_b32 s12, s{S_WAVE}, 22
    s_lshl_b32 s13, s9, 14
    s_add_u32 s12, s12, s13
    s_add_u32 s12, s12, {OX_OFF}''')
    def loads(buf, kkl):
        for j in range(5):
            A(f's_add_u32 s16, s11, {j*128*1024 + kkl*1024}')
            A(f'buffer_load_dwordx4 {v(V_A + buf*20 + j*4, 4)}, v2, {ws}, s16 offen')
        for tt in range(4):
            A(f's_add_u32 s16, s12, {(kkl>>2)*64*8192 + (tt>>1)*8192 + (tt&1)*4096 + (kkl&3)*1024}')
            A(f'buffer_load_dwordx4 {v(V_B2 + buf*16 + tt*4, 4)}, v2, {ws}, s16 offen')
    loads(0, 0)
    for kkl in range(32):
        buf = kkl % 2
        if kkl + 1 < 32:
            loads(1 - buf, kkl + 1)
            A('s_waitcnt vmcnt(9)')
        else:
            A('s_waitcnt vmcnt(0)')
        for j in range(5):
            for tt in range(4):
                d = V_AC + (j * 4 + tt) * 4
                mfma32(A, v(d, 4), v(V_A + buf * 20 + j * 4, 4), v(V_B2 + buf * 16 + tt * 4, 4), '0' if kkl == 0 else v(d, 4))
    A.nop(8)
    A(f'''s_mul_i32 s16, s{S_WAVE}, 20480
    v_add_u32 v3, s16, v2''')
    for t in range(20):
        A(f'ds_write_b128 v3, {v(V_AC + t*4, 4)} offset:{t*1024}')
    A('s_waitcnt lgkmcnt(0)')
    A('s_barrier')
    A(f'''s_mul_i32 s16, s{S_WAVE}, 5120
    v_add_u32 v3, s16, v2
    v_add_u32 v4, 40960, v3''')
    for i in range(5):
        A(f'ds_read_b128 {v(16 + i*16, 4)}, v3 offset:{i*1024}')
        A(f'ds_read_b128 {v(20 + i*16, 4)}, v3 offset:{i*1024 + 20480}')
        A(f'ds_read_b128 {v(24 + i*16, 4)}, v4 offset:{i*1024}')
        A(f'ds_read_b128 {v(28 + i*16, 4)}, v4 offset:{i*1024 + 20480}')
        if i % 2 == 1: A('s_waitcnt lgkmcnt(0)')
    A('s_waitcnt lgkmcnt(0)')
    A(f'''v_and_b32 v5, 15, v1
    v_mul_u32_u24 v5, 2560, v5
    v_lshrrev_b32 v6, 4, v1
    v_lshlrev_b32 v6, 3, v6
    v_add_u32 v5, v5, v6
    s_mul_i32 s15, s9, {64*2560}
    s_mul_i32 s16, s10, 160
    s_add_u32 s15, s15, s16
    s_add_u32 s15, s15, 1280
    s_mul_i32 s17, s{S_WAVE}, 5''')
    for i in range(5):
        b = 16 + i * 16
        for r in range(4):
            A(f'v_add_f32 v{b+r}, v{b+r}, v{b+4+r}')
            A(f'v_add_f32 v{b+8+r}, v{b+8+r}, v{b+12+r}')
        for r in range(4):
            A(f'v_add_f32 v{b+r}, v{b+r}, v{b+8+r}')
        A(f'''v_cvt_pk_bf16_f32 v{b}, v{b}, v{b+1}
        v_cvt_pk_bf16_f32 v{b+1}, v{b+2}, v{b+3}
        s_add_u32 s18, s17, {i}
        s_lshr_b32 s19, s18, 2
        s_and_b32 s18, s18, 3
        s_mul_i32 s18, s18, {16*2560}
        s_lshl_b32 s19, s19, 5
        s_add_u32 s18, s18, s19
        s_add_u32 s18, s18, s15
        buffer_store_dwordx2 v[{b}:{b+1}], v5, s[20:23], s18 offen''')
    A('s_barrier')

def outs_task(A, wait):
    ws = f's[{S_WS}:{S_WS+3}]'
    A(f'''s_load_dwordx2 s[28:29], s[0:1], {KA['out']}
    v_lshlrev_b32 v2, 4, v1
    s_lshl_b32 s12, s11, 18                 ; 2*db32*128KB
    s_lshl_b32 s13, s{S_WAVE}, 15
    s_add_u32 s12, s12, s13
    s_add_u32 s12, s12, {WOF_OFF}
    s_waitcnt lgkmcnt(0)''')
    srd(A, 20, 28, 29, 2048 * 2560)
    for j in range(2):
        for q in range(8):
            A(f's_add_u32 s16, s12, {j*128*1024 + q*4096}')
            for r in range(4):
                A(f'buffer_load_dwordx4 {a((j*32+q*4+r)*4,4)}, v2, {ws}, s16 offen offset:{r*1024}')
        if j == 0:
            A('s_waitcnt vmcnt(16)')
    wait(A)
    A(f'''s_lshl_b32 s13, s{S_WAVE}, 22
    s_lshl_b32 s16, s9, 13
    s_add_u32 s13, s13, s16
    s_lshl_b32 s16, s10, 12
    s_add_u32 s13, s13, s16
    s_add_u32 s13, s13, {OX_OFF}''')
    for hh in range(8):
        A(f's_add_u32 s16, s13, {hh*64*8192}')
        for ks in range(4):
            A(f'buffer_load_dwordx4 {v(64+(hh*4+ks)*4,4)}, v2, {ws}, s16 offen offset:{ks*1024}')
    for kkl in range(32):
        if kkl % 4 == 0:
            A(f's_waitcnt vmcnt({28 - kkl})')
        for j in range(2):
            d = v(16 + j * 4, 4)
            mfma32(A, d, a((j * 32 + kkl) * 4, 4), v(64 + kkl * 4, 4), '0' if kkl == 0 else d)
    A.nop(8)
    A(f'''s_lshl_b32 s16, s{S_WAVE}, 11
    v_add_u32 v3, s16, v2
    ds_write_b128 v3, v[16:19]
    ds_write_b128 v3, v[20:23] offset:1024
    s_waitcnt lgkmcnt(0)
    s_barrier''')
    l = A.lab('os')
    A(f'''s_cmp_ge_u32 s{S_WAVE}, 2
    s_cbranch_scc1 {l}
    s_lshl_b32 s16, s{S_WAVE}, 10
    v_add_u32 v3, s16, v2
    ds_read_b128 v[16:19], v3
    ds_read_b128 v[20:23], v3 offset:2048
    ds_read_b128 v[24:27], v3 offset:4096
    ds_read_b128 v[28:31], v3 offset:6144
    v_and_b32 v5, 15, v1
    v_mul_u32_u24 v5, 2560, v5
    v_lshrrev_b32 v6, 4, v1
    v_lshlrev_b32 v6, 3, v6
    v_add_u32 v5, v5, v6
    s_lshl_b32 s15, s9, 5
    s_lshl_b32 s16, s10, 4
    s_add_u32 s15, s15, s16                 ; token0
    s_mul_i32 s15, s15, 2560
    s_lshl_b32 s16, s11, 6
    s_add_u32 s15, s15, s16
    s_lshl_b32 s16, s{S_WAVE}, 5
    s_add_u32 s15, s15, s16
    s_add_u32 s15, s15, 1280
    s_waitcnt lgkmcnt(0)''')
    for r in range(4):
        A(f'v_add_f32 v{16+r}, v{16+r}, v{20+r}')
        A(f'v_add_f32 v{24+r}, v{24+r}, v{28+r}')
    for r in range(4):
        A(f'v_add_f32 v{16+r}, v{16+r}, v{24+r}')
    A(f'''v_cvt_pk_bf16_f32 v16, v16, v17
    v_cvt_pk_bf16_f32 v17, v18, v19
    buffer_store_dwordx2 v[16:17], v5, s[20:23], s15 offen
    {l}:
    s_barrier''')
```

```python
from common import *

MEML = 0
RED = 10240
ROLE = 17408
HISTL = 18432
STAGE = 20480
CHAIN_LDS = 143360
KXL = 20480
VXL = 20480 + 32768

V_E1LD, V_E1W, V_MEMR, V_FST, V_FVST, V_HF, V_HV, V_FLD, V_FVLD = 10, 11, 12, 13, 14, 15, 16, 17, 18
V_KX0, V_KX1, V_VX0, V_VX1, V_REDW, V_REDR, V_E3ST, V_E3L0, V_E3L1, V_E1ST = 19, 20, 21, 22, 23, 24, 25, 26, 27, 28
V_PF = 29
V_SENT = 30
V_ACC2 = 104
V_IDX = 125
A_SUM = 248
V_PFD = 9
V_L16 = 105
V_HK = 112
V_HVV = 114
V_FLH = 123
V_FLKV = 124
V_HF2 = 121
V_HV2 = 122
V_HIL = 127
V_SENT4 = 108
V_KLR = 120
V_CINIT = 32
V_ACC = 36
V_E1P = 40
V_E3P = 52
V_E3A = 60
V_E1Q = 56
V_MEMF = 64
V_VPXA = 64
V_VPMA = 88
V_VX = 144
V_F = 176
V_FV = 192
V_VPX = 208
V_VPM = 220
V_TM, V_T0, V_T1 = 226, 230, 234
V_PX, V_PM = 238, 242
V_D = 244
A_WA, A_WV, A_WO, A_KX, A_SEL, A_ONE = 0, 80, 160, 208, 240, 244
S_WS = 4
S_T = 8
S_XCC, S_TK, S_W, S_G, S_TT, S_STEP = 12, 13, 14, 16, 17, 18
S_E1C, S_E1C1, S_E1C2, S_E1N, S_E1CL, S_E2C, S_E2CL, S_E3C, S_E3CL, S_KXN, S_HFO, S_HVO = 20, 21, 22, 23, 24, 25, 26, 27, 28, 29, 38, 39
M_I8, M_L32, M_E1ST, M_RED = 30, 32, 34, 36
S_C = 40
S_TO = 41
S_PAR = 42
S_MODE = 43
S_SENT = 44
S_PFO = 45
S_HB = 46
S_D0, S_D1 = 47, 48
M_L4 = 50
S_KVF = 52
V_KVV = 126
V_H2 = 100
V_HT = 116
M_E3W = 94
M_EV = 60
TIMEOUT = 1 << 20

def mfma32(A, d, x, y, c):
    A(f'v_mfma_f32_16x16x32_bf16 {d}, {x}, {y}, {c}')
def mfma16(A, d, x, y, c):
    A(f'v_mfma_f32_16x16x16_bf16 {d}, {x}, {y}, {c}')

def check_regs(A, regs, tmp, lab_ok, lab_retry_fallthrough=None):
    regs = list(regs)
    cur = None
    if len(regs) >= 3:
        A(f'v_max3_u32 v{tmp}, v{regs[0]}, v{regs[1]}, v{regs[2]}'); rest = regs[3:]
    else:
        A(f'v_max_u32 v{tmp}, v{regs[0]}, v{regs[1]}'); rest = regs[2:]
    while rest:
        if len(rest) >= 2:
            A(f'v_max3_u32 v{tmp}, v{tmp}, v{rest[0]}, v{rest[1]}'); rest = rest[2:]
        else:
            A(f'v_max_u32 v{tmp}, v{tmp}, v{rest[0]}'); rest = rest[1:]
    A(f'v_cmp_eq_u32 vcc, -1, v{tmp}')
    A(f's_cbranch_vccz {lab_ok}')

def retry_tail(A, lab_top, abort, sleep=0, site=None):
    if site is not None:
        A(f's_add_u32 s{90+site}, s{90+site}, 1')
    if sleep:
        A(f's_sleep {sleep}')
    A(f'''s_add_u32 s{S_TO}, s{S_TO}, 1
    s_cmp_lt_u32 s{S_TO}, {TIMEOUT}
    s_cbranch_scc1 {lab_top}
    s_branch {abort}''')

def stamp(A, cfg, idx):
    if not cfg.get('stamps'):
        return
    l = A.lab('st')
    A(f'''s_cmp_lg_u32 s{S_STEP}, {cfg.get('tstep', 30)}
    s_cbranch_scc1 {l}
    s_memtime s[56:57]
    s_waitcnt lgkmcnt(0)
    s_mov_b32 s{74+idx}, s56
    {l}:''')

class Cap:
    def __init__(self): self.l=[]
    def __call__(self, t):
        for x in t.split('\n'):
            x=x.strip()
            if x: self.l.append(x)
    def nop(self,n):
        while n>0:
            k=min(n,16); self.l.append('s_nop %d'%(k-1)); n-=k

def weave(A, prim, sec, start=0, every=2):
    sec=list(sec); nxt=start
    for i,x in enumerate(prim):
        A(x)
        if sec and i>=nxt and not x.startswith('s_waitcnt') :
            A(sec.pop(0)); nxt=i+every
    for x in sec: A(x)

def vpx_compute(A):
    for kt in range(2):
        for tau in range(3):
            d = V_VPXA + (kt * 3 + tau) * 4
            for ks in range(4):
                c = '0' if ks == 0 else v(d, 4)
                mfma32(A, v(d, 4), v(V_VX + (kt * 4 + ks) * 4, 4), a(A_WO + (ks * 3 + tau) * 4, 4), c)
    A.nop(8)
    for tau in range(3):
        for kt in range(2):
            d = V_VPXA + (kt * 3 + tau) * 4
            A(f'v_cvt_pk_bf16_f32 v{V_VPX + tau*4 + kt*2}, v{d}, v{d+1}')
            A(f'v_cvt_pk_bf16_f32 v{V_VPX + tau*4 + kt*2 + 1}, v{d+2}, v{d+3}')

def load_kx(A, soff):
    for kt in range(2):
        for ks in range(4):
            A(f'buffer_load_dwordx4 {a(A_KX + (kt*4+ks)*4, 4)}, v{V_KX0+kt}, s[{S_WS}:{S_WS+3}], {soff} offen offset:{ks*1024}')
def load_vx(A, soff):
    for kt in range(2):
        for ks in range(4):
            A(f'buffer_load_dwordx4 {v(V_VX + (kt*4+ks)*4, 4)}, v{V_VX0+kt}, s[{S_WS}:{S_WS+3}], {soff} offen offset:{ks*1024}')

def dma_list(seg_k_sreg, seg_v_sreg):
    ws = f's[{S_WS}:{S_WS+3}]'
    out = []
    for reg, (sreg, goff, loff) in enumerate(((seg_k_sreg, KX_OFF, KXL), (seg_v_sreg, VX_OFF, VXL))):
        for hh in range(4):
            for half in range(2):
                grp = [f's_add_u32 s{S_D0}, s{S_HB}, s{sreg}',
                       f's_add_u32 s{S_D0}, s{S_D0}, {goff + (hh << 19) + half * 4096}',
                       f's_mov_b32 m0, {loff + hh * 8192 + half * 4096}',
                       's_nop 0']
                for q in range(4):
                    grp.append(f'buffer_load_dwordx4 v{V_L16}, {ws}, s{S_D0} offen offset:{q*1024} lds')
                out.append(grp)
    return out

def lds_kx(A):
    for i in range(8):
        A(f'ds_read_b128 {a(A_KX + i*4, 4)}, v{V_KLR} offset:{i*1024}')
def lds_vx(A):
    for i in range(8):
        A(f'ds_read_b128 {v(V_VX + i*4, 4)}, v{V_KLR} offset:{32768 + i*1024}')

SPARSE = True
def proj_tile(A, wbase):
    for blk in range(10):
        A(f'v_smfmac_f32_16x16x64_bf16 {v(V_ACC,4)}, {v(V_MEMF + blk*4, 4)}, {a(wbase + blk*8, 8)}, v{V_IDX}')

def acc_zero(A):
    for r in range(4):
        A(f'v_mov_b32 v{V_ACC+r}, 0')

def proj_fin(A, r0, r1):
    A(f'''v_cvt_pk_bf16_f32 v{V_ACC2}, v{V_ACC}, v{V_ACC+1}
    v_cvt_pk_bf16_f32 v{V_ACC2+1}, v{V_ACC+2}, v{V_ACC+3}
    s_nop 1
    v_mfma_f32_16x16x16_bf16 {v(V_ACC,4)}, v[{V_ACC2}:{V_ACC2+1}], {a(A_SUM,2)}, 0''')
    A.nop(8)
    A(f'''v_cvt_pk_bf16_f32 v{r0}, v{V_ACC}, v{V_ACC+1}
    v_cvt_pk_bf16_f32 v{r1}, v{V_ACC+2}, v{V_ACC+3}
    v_min_u32 v{r0}, s{S_SENT}, v{r0}
    v_min_u32 v{r1}, s{S_SENT}, v{r1}''')

def max_chain(regs, tmp):
    regs = list(regs); out = []
    out.append(f'v_max3_u32 v{tmp}, v{regs[0]}, v{regs[1]}, v{regs[2]}'); rest = regs[3:]
    while rest:
        if len(rest) >= 2:
            out.append(f'v_max3_u32 v{tmp}, v{tmp}, v{rest[0]}, v{rest[1]}'); rest = rest[2:]
        else:
            out.append(f'v_max_u32 v{tmp}, v{tmp}, v{rest[0]}'); rest = rest[1:]
    return out

def hist_handoff(A):
    A(f'ds_write_b128 v{V_HIL}, v[{V_HK}:{V_HK+3}] offset:{HISTL}')
def wide(A, src0, src1, dst):
    A(f'''v_mov_b32 v{dst}, v{src0}
    v_mov_b32 v{dst+1}, v{src1}
    v_mov_b32 v{dst+2}, v{src0}
    v_mov_b32 v{dst+3}, v{src1}
    s_nop 1
    v_permlane16_swap_b32 v{dst}, v{dst+2}
    v_permlane16_swap_b32 v{dst+1}, v{dst+3}''')
def hist_store(A, from_lds=True):
    ws = f's[{S_WS}:{S_WS+3}]'
    A(f'ds_read_b128 v[{V_H2}:{V_H2+3}], v{V_HIL} offset:{HISTL}')
    for (s0, areg, soff, off) in ((V_HK, V_HF, S_HFO, 0), (V_HVV, V_HV, S_HVO, 0)):
        wide(A, s0, s0 + 1, V_HT)
        A(f'''s_mov_b64 exec, s[{M_EV}:{M_EV+1}]
        buffer_store_dwordx4 v[{V_HT}:{V_HT+3}], v{areg}, {ws}, s{soff} offen sc1
        s_mov_b64 exec, -1
        s_nop 1''')
    A('s_waitcnt lgkmcnt(0)')
    for (s0, areg, soff) in ((V_H2, V_HF2, S_HFO), (V_H2 + 2, V_HV2, S_HVO)):
        wide(A, s0, s0 + 1, V_HT)
        A(f'''s_mov_b64 exec, s[{M_EV}:{M_EV+1}]
        buffer_store_dwordx4 v[{V_HT}:{V_HT+3}], v{areg}, {ws}, s{soff} offen sc1
        s_mov_b64 exec, -1
        s_nop 1''')
def hist_signal(A, prev=False):
    ws = f's[{S_WS}:{S_WS+3}]'
    if prev:
        A(f's_sub_u32 s{S_D0}, s{S_STEP}, 1')
        A(f's_lshl_b32 s{S_D0}, s{S_D0}, 10')
    else:
        A(f's_lshl_b32 s{S_D0}, s{S_STEP}, 10')
    A(f'''v_mov_b32 v2, 1
    v_mov_b32 v3, 1
    s_mov_b64 exec, 1
    buffer_store_dwordx2 v[2:3], v{V_FLH}, {ws}, s{S_D0} offen sc1
    s_mov_b64 exec, -1''')
def hist_prev(A):
    l = A.lab('hp')
    A(f's_cmp_eq_u32 s{S_STEP}, 0')
    A(f's_cbranch_scc1 {l}')
    hist_signal(A, prev=True)
    A(f'{l}:')
def kv_wait(A, seg_sreg, abort):
    ws = f's[{S_WS}:{S_WS+3}]'
    lp = A.lab('kvw'); ok = A.lab('kvok')
    A(f'''s_lshl_b32 s{S_D1}, s{seg_sreg}, 2
    s_mov_b32 s{S_TO}, 0
    {lp}:
    buffer_load_dword v2, v{V_FLKV}, {ws}, s{S_D1} offen sc1
    s_waitcnt vmcnt(0)
    s_nop 0
    v_readfirstlane_b32 s15, v2
    s_nop 3
    s_cmp_ge_u32 s15, 4
    s_cbranch_scc1 {ok}
    s_sleep 2
    s_add_u32 s{S_TO}, s{S_TO}, 1
    s_cmp_lt_u32 s{S_TO}, {TIMEOUT}
    s_cbranch_scc1 {lp}
    s_branch {abort}
    {ok}:''')

def gen_loop(A, cfg, fast, P):
    st = '' if fast else 'sc1'
    ws = f's[{S_WS}:{S_WS+3}]'
    abort = P + '_abort'
    top = A.lab('top')
    def vx_loads(soff):
        c = Cap(); load_vx(c, soff); return c.l
    def kx_loads(soff):
        c = Cap(); load_kx(c, soff); return c.l
    vxl = vx_loads(f's{S_KXN}')
    kxl = kx_loads(f's{S_KXN}')
    f_loads = [f'buffer_load_dwordx4 {v(V_F+ks*4,4)}, v{V_FLD}, {ws}, s{S_E2C} offen offset:{ks*1024} sc1' for ks in range(4)]
    fv_loads = [f'buffer_load_dwordx4 {v(V_FV+ks*4,4)}, v{V_FVLD}, {ws}, s{S_E2C} offen offset:{ks*512} sc1' for ks in range(4)]
    e3_loads = [f'buffer_load_dwordx4 {v(V_E3P,4)}, v{V_E3L0}, {ws}, s{S_E3C} offen sc1',
                f'buffer_load_dwordx4 {v(V_E3P+4,4)}, v{V_E3L1}, {ws}, s{S_E3C} offen sc1']
    A(f'{top}:')
    A(f'''s_and_b32 s15, s{S_STEP}, 3
    s_lshl_b32 s{S_E1C}, s15, 14
    s_add_u32 s{S_E1C1}, s{S_E1C}, 6144
    s_add_u32 s{S_E1C2}, s{S_E1C}, 9216
    s_lshl_b32 s{S_E2C}, s15, 15
    s_mul_i32 s{S_E3C}, s15, {E3_S}
    s_add_u32 s15, s{S_STEP}, 1
    s_lshl_b32 s{S_KXN}, s15, 13
    s_and_b32 s15, s15, 3
    s_lshl_b32 s{S_E1N}, s15, 14
    s_add_u32 s15, s{S_STEP}, 2
    s_lshl_b32 s{S_PFO}, s15, 13
    s_and_b32 s15, s15, 3
    s_lshl_b32 s{S_E2CL}, s15, 15
    s_mul_i32 s{S_E3CL}, s15, {E3_S}
    s_add_u32 s15, s{S_STEP}, 3
    s_and_b32 s15, s15, 3
    s_lshl_b32 s{S_E1CL}, s15, 14
    s_lshl_b32 s{S_HFO}, s{S_STEP}, 17
    s_lshl_b32 s{S_HVO}, s{S_STEP}, 16''')
    if cfg.get('steplog'):
        l_sl = A.lab('sl')
        A(f'''s_cmp_lg_u32 s{S_W}, 0
        s_cbranch_scc1 {l_sl}
        s_memtime s[56:57]
        s_memrealtime s[58:59]
        s_waitcnt lgkmcnt(0)
        s_lshl_b32 s15, s{S_G}, 4
        s_add_u32 s15, s15, s{S_TT}
        s_lshl_b32 s15, s15, 6
        s_add_u32 s15, s15, s{S_STEP}
        s_lshl_b32 s15, s15, 3
        s_add_u32 s15, s15, {STAMP_OFF + 131072}
        v_mov_b32 v2, s56
        v_mov_b32 v3, s58
        v_mov_b32 v4, s15
        s_mov_b64 exec, 1
        buffer_store_dwordx2 v[2:3], v4, {ws}, 0 offen
        s_mov_b64 exec, -1
        {l_sl}:''')
    A(vxl[0]); A(vxl[1])
    l_stage = A.lab('stage')
    A(f's_cmp_eq_u32 s{S_STEP}, 0')
    A(f's_cbranch_scc1 {l_stage}')
    l_p = A.lab('e1poll'); l_ok = A.lab('e1ok'); l_two = A.lab('e1two'); l_skip = A.lab('e1skip')
    A(f's_cmp_eq_u32 s{S_W}, 3')
    A(f's_cbranch_scc1 {l_skip}')
    A(f's_mov_b32 s{S_TO}, 0')
    if cfg.get('e1_sleep'):
        A(f's_sleep {cfg["e1_sleep"]}')
    A(f'{l_p}:')
    A(f'buffer_load_dwordx4 {v(V_E1P,4)}, v{V_E1LD}, {ws}, s{S_E1C} offen sc1')
    A(f'buffer_load_dwordx4 {v(V_E1P+4,4)}, v{V_E1LD}, {ws}, s{S_E1C} offen offset:3072 sc1')
    A(f'buffer_load_dwordx4 {v(V_E1P+8,4)}, v{V_E1LD}, {ws}, s{S_E1C1} offen sc1')
    A(f's_cmp_lg_u32 s{S_W}, 0')
    A(f's_cbranch_scc1 {l_two}')
    A(f'buffer_load_dwordx4 {v(V_E1Q,4)}, v{V_E1LD}, {ws}, s{S_E1C2} offen sc1')
    A(f'{l_two}:')
    A('s_waitcnt vmcnt(0)')
    check_regs(A, list(range(V_E1P, V_E1P + 12)) + list(range(V_E1Q, V_E1Q + 4)), 2, l_ok)
    retry_tail(A, l_p, abort, cfg.get('e1_retry_sleep', 0), 0 if (cfg.get('stamps') or cfg.get('tot')) else None)
    A(f'{l_ok}:')
    A(f'{l_stage}:')
    stamp(A, cfg, 0)
    A(f's_cmp_eq_u32 s{S_W}, 3')
    A(f's_cbranch_scc1 {l_skip}')
    A(f'ds_write_b128 v{V_E1W}, {v(V_E1P,4)}')
    A(f'ds_write_b128 v{V_E1W}, {v(V_E1P+4,4)} offset:3072')
    A(f'ds_write_b128 v{V_E1W}, {v(V_E1P+8,4)} offset:6144')
    l_n3 = A.lab('n3')
    A(f's_cmp_lg_u32 s{S_W}, 0')
    A(f's_cbranch_scc1 {l_n3}')
    A(f'ds_write_b128 v{V_E1W}, {v(V_E1Q,4)} offset:9216')
    A(f'{l_n3}:')
    A(f'{l_skip}:')
    A('s_waitcnt lgkmcnt(0)')
    A('s_barrier')
    stamp(A, cfg, 1)
    for p in range(10):
        A(f'ds_read_b128 {v(V_MEMF+p*4,4)}, v{V_MEMR} offset:{p*1024}')
    acc_zero(A)
    A(vxl[2])
    for blk in range(10):
        A(f's_waitcnt lgkmcnt({9 - blk})')
        A(f'v_smfmac_f32_16x16x64_bf16 {v(V_ACC,4)}, {v(V_MEMF + blk*4, 4)}, {a(A_WA + blk*8, 8)}, v{V_IDX}')
        if blk == 3: A(vxl[3])
        if blk == 7: A(vxl[4])
    A.nop(8)
    stamp(A, cfg, 2)
    proj_fin(A, 2, 3)
    A(f'''s_mov_b64 exec, s[{M_I8}:{M_I8+1}]
    buffer_store_dwordx2 v[2:3], v{V_FST}, {ws}, s{S_E2C} offen {st}
    buffer_store_dwordx2 v[{V_SENT}:{V_SENT+1}], v{V_FST}, {ws}, s{S_E2CL} offen {st}''')
    l_w01 = A.lab('w01'); l_j = A.lab('j')
    l_done = P + '_done'
    A(f's_cmp_lt_u32 s{S_W}, 2')
    A(f's_cbranch_scc1 {l_w01}')
    A('s_mov_b64 exec, -1')
    A(f'v_mov_b32 v{V_HK}, v2')
    A(f'v_mov_b32 v{V_HK+1}, v3')
    acc_zero(A)
    A('s_nop 1')
    c = Cap(); proj_tile(c, A_WV)
    fpos = cfg.get('f_in_v', 99)
    for i, x in enumerate(c.l):
        A(x)
        if i in (1, 4, 7): A(vxl[5 + (i - 1) // 3])
        if i >= fpos and i - fpos < 4: A(f_loads[i - fpos])
    pend_f = [f_loads[q] for q in range(max(0, min(4, 10 - fpos)), 4)]
    A.nop(8)
    proj_fin(A, 4, 5)
    A(f'''s_mov_b64 exec, s[{M_I8}:{M_I8+1}]
    buffer_store_dwordx2 v[4:5], v{V_FVST}, {ws}, s{S_E2C} offen {st}
    buffer_store_dwordx2 v[{V_SENT}:{V_SENT+1}], v{V_FVST}, {ws}, s{S_E2CL} offen {st}
    s_mov_b64 exec, -1
    v_mov_b32 v{V_HVV}, v4
    v_mov_b32 v{V_HVV+1}, v5''')
    for x in pend_f: A(x)
    nyoung = 0 if len(pend_f) == 4 else 2
    stamp(A, cfg, 3)
    l_last = A.lab('last23')
    A(f's_cmp_ge_u32 s{S_STEP}, 63')
    A(f's_cbranch_scc1 {l_last}')
    A(f's_mov_b32 s{S_TO}, 0')
    l_sc = A.lab('scores'); l_sc2 = A.lab('scores2')
    fvpos = cfg.get('fvpos', 1)
    def scores(extra, with_fv):
        for ks in range(4):
            add = 4 if (with_fv and ks > fvpos) else 0
            A(f's_waitcnt vmcnt({extra + 3 - ks + add})')
            f = v(V_F + ks * 4, 4)
            mfma32(A, v(V_TM, 4), f, f, v(V_CINIT, 4) if ks == 0 else v(V_TM, 4))
            mfma32(A, v(V_T0, 4), a(A_KX + ks * 4, 4), f, '0' if ks == 0 else v(V_T0, 4))
            mfma32(A, v(V_T1, 4), a(A_KX + (4 + ks) * 4, 4), f, '0' if ks == 0 else v(V_T1, 4))
            if with_fv and ks == fvpos:
                for x in fv_loads: A(x)
    l_ok = A.lab('e2ok'); l_p = A.lab('e2poll')
    scores(nyoung, True)
    check_regs(A, range(V_F, V_F + 16), 2, l_ok)
    A(f's_branch {l_p}')
    A(f'{l_w01}:')
    A('s_mov_b64 exec, -1')
    for x in vxl[5:8]: A(x)
    if cfg.get('e2_sleep'):
        A(f's_sleep {cfg["e2_sleep"]}')
    stamp(A, cfg, 3)
    l_bd = A.lab('bd')
    A(f's_cmp_ge_u32 s{S_STEP}, 63')
    A(f's_cbranch_scc1 {l_bd}')
    A(f's_mov_b32 s{S_TO}, 0')
    for x in f_loads: A(x)
    scores(0, True)
    check_regs(A, range(V_F, V_F + 16), 2, l_ok)
    A(f'{l_p}:')
    if cfg.get('stamps') or cfg.get('tot'): A('s_add_u32 s91, s91, 1')
    for x in f_loads: A(x)
    scores(0, False)
    check_regs(A, range(V_F, V_F + 16), 2, l_ok)
    retry_tail(A, l_p, abort, cfg.get('e2_retry_sleep', 0), None)
    A(f'{l_ok}:')
    if fvpos >= 4:
        for x in fv_loads: A(x)
    A(f'v_readfirstlane_b32 s{S_KVF}, v{V_KVV}')
    stamp(A, cfg, 4)
    allT = list(range(V_TM, V_TM + 4)) + list(range(V_T0, V_T0 + 4)) + list(range(V_T1, V_T1 + 4))
    A(f'''v_max3_f32 v2, v{V_TM}, v{V_TM+1}, v{V_TM+2}
    v_max3_f32 v3, v{V_TM+3}, v{V_T0}, v{V_T0+1}
    v_max3_f32 v4, v{V_T0+2}, v{V_T0+3}, v{V_T1}
    v_max3_f32 v5, v{V_T1+1}, v{V_T1+2}, v{V_T1+3}
    v_max3_f32 v2, v2, v3, v4
    v_max_f32 v2, v2, v5
    v_mov_b32 v3, v2
    s_nop 1
    v_permlane16_swap_b32 v2, v3
    v_max_f32 v2, v2, v3
    v_mov_b32 v3, v2
    s_nop 1
    v_permlane32_swap_b32 v2, v3
    v_max_f32 v2, v2, v3
    v_mul_f32 v2, s{S_C}, v2''')
    for r in allT:
        A(f'v_fma_f32 v{r}, v{r}, s{S_C}, -v2')
    A(kxl[0])
    def vpm_mfmas(weave_exp, younger):
        ex = list(allT) if weave_exp else []
        for ks in range(4):
            A(f's_waitcnt vmcnt({younger + 3 - ks})')
            for tau in range(3):
                d = V_VPMA + tau * 4
                mfma32(A, v(d, 4), v(V_FV + ks * 4, 4), a(A_WO + (ks * 3 + tau) * 4, 4), '0' if ks == 0 else v(d, 4))
                if ex:
                    r = ex.pop(0); A(f'v_exp_f32 v{r}, v{r}')
    vpm_mfmas(True, 1)
    A(kxl[1])
    A(f'''v_cvt_pk_bf16_f32 v{V_PX}, v{V_T0}, v{V_T0+1}
    v_cvt_pk_bf16_f32 v{V_PX+1}, v{V_T0+2}, v{V_T0+3}
    v_cvt_pk_bf16_f32 v{V_PM}, v{V_TM}, v{V_TM+1}
    v_cvt_pk_bf16_f32 v{V_PM+1}, v{V_TM+2}, v{V_TM+3}
    v_cvt_pk_bf16_f32 v{V_PX+2}, v{V_T1}, v{V_T1+1}
    v_cvt_pk_bf16_f32 v{V_PX+3}, v{V_T1+2}, v{V_T1+3}''')
    A.nop(2)
    for tau in range(3):
        mfma32(A, v(V_D + tau * 4, 4), v(V_VPX + tau * 4, 4), v(V_PX, 4), '0')
    mfma32(A, v(V_TM, 4), a(A_ONE, 4), v(V_PX, 4), '0')
    stamp(A, cfg, 5)
    l_p = A.lab('fvgo'); l_ok = A.lab('fvok')
    A(f's_mov_b32 s{S_TO}, 0')
    for x in max_chain(range(V_FV, V_FV + 16), 2): A(x)
    A('v_cmp_eq_u32 vcc, -1, v2')
    A(f's_cbranch_vccz {l_ok}')
    A(f'{l_p}:')
    if cfg.get('stamps') or cfg.get('tot'): A('s_add_u32 s92, s92, 1')
    for x in fv_loads: A(x)
    A('s_waitcnt vmcnt(0)')
    vpm_mfmas(False, 0)
    for x in max_chain(range(V_FV, V_FV + 16), 2): A(x)
    A('v_cmp_eq_u32 vcc, -1, v2')
    A(f's_cbranch_vccz {l_ok}')
    retry_tail(A, l_p, abort, 0, None)
    A(f'{l_ok}:')
    stamp(A, cfg, 6)
    mfma16(A, v(V_TM, 4), a(A_ONE, 2), v(V_PM, 2), v(V_TM, 4))
    for tau in range(3):
        d = V_VPMA + tau * 4
        A(f'v_cvt_pk_bf16_f32 v{V_VPM+tau*2}, v{d}, v{d+1}')
        A(f'v_cvt_pk_bf16_f32 v{V_VPM+tau*2+1}, v{d+2}, v{d+3}')
    A.nop(2)
    A(f'v_rcp_f32 v2, v{V_TM}')
    A('s_nop 0')
    for tau in range(3):
        mfma16(A, v(V_D + tau * 4, 4), v(V_VPM + tau * 2, 2), v(V_PM, 2), v(V_D + tau * 4, 4))
    A(kxl[2])
    A.nop(5)
    for tau in range(3):
        for h in range(2):
            r = V_D + tau * 4 + h * 2
            A(f'v_pk_mul_f32 v[{r}:{r+1}], v[{r}:{r+1}], v[2:3] op_sel_hi:[1,0]')
        A(f'v_cvt_pk_bf16_f32 v{V_PX+0}, v{V_D+tau*4}, v{V_D+tau*4+1}' if False else f'v_cvt_pk_bf16_f32 v{V_T0+tau*2}, v{V_D+tau*4}, v{V_D+tau*4+1}')
        A(f'v_cvt_pk_bf16_f32 v{V_T0+tau*2+1}, v{V_D+tau*4+2}, v{V_D+tau*4+3}')
    A(f's_mov_b64 exec, s[{M_I8}:{M_I8+1}]')
    for tau in range(3):
        A(f'ds_write_b64 v{V_REDW}, v[{V_T0+tau*2}:{V_T0+tau*2+1}] offset:{tau*256}')
    A('s_mov_b64 exec, -1')
    l_h2 = A.lab('h2')
    A(f's_cmp_lg_u32 s{S_W}, 2')
    A(f's_cbranch_scc1 {l_h2}')
    hist_handoff(A)
    A(f'{l_h2}:')
    A(kxl[3])
    A('s_waitcnt lgkmcnt(0)')
    A('s_barrier')
    stamp(A, cfg, 7)
    l_nored = A.lab('nored'); l_w3 = A.lab('w3')
    A(f's_cmp_ge_u32 s{S_W}, 3')
    A(f's_cbranch_scc1 {l_w3}')
    A(f'ds_read_b128 {v(V_F,4)}, v{V_REDR}')
    A('s_waitcnt lgkmcnt(0)')
    mfma32(A, v(V_E3A, 4), a(A_SEL, 4), v(V_F, 4), '0')
    A.nop(8)
    A(f'''v_cvt_pk_bf16_f32 v2, v{V_E3A}, v{V_E3A+1}
    v_cvt_pk_bf16_f32 v3, v{V_E3A+2}, v{V_E3A+3}
    v_min_u32 v2, s{S_SENT}, v2
    v_min_u32 v3, s{S_SENT}, v3''')
    if cfg.get('e3wide'):
        A('''v_mov_b32 v4, v2
        v_mov_b32 v5, v3
        s_nop 1
        v_permlane16_swap_b32 v2, v4
        v_permlane16_swap_b32 v3, v5''')
        A(f's_mov_b64 exec, s[{M_E3W}:{M_E3W+1}]')
        A(f'buffer_store_dwordx4 v[2:5], v{V_E3ST}, {ws}, s{S_E3C} offen sc1')
        if cfg.get('e3clr', 3) < 0:
            A(f'buffer_store_dwordx4 v[{V_SENT4}:{V_SENT4+3}], v{V_E3ST}, {ws}, s{S_E3CL} offen sc1')
    else:
        A(f's_mov_b64 exec, s[{M_E1ST}:{M_E1ST+1}]')
        A(f'buffer_store_dwordx2 v[2:3], v{V_E3ST}, {ws}, s{S_E3C} offen sc1')
        if cfg.get('e3clr', 3) < 0:
            A(f'buffer_store_dwordx2 v[{V_SENT}:{V_SENT+1}], v{V_E3ST}, {ws}, s{S_E3CL} offen sc1')
    A('s_mov_b64 exec, -1')
    stamp(A, cfg, 8)
    c = Cap(); vpx_compute(c)
    e3pos = cfg.get('e3_in_vpx', 14)
    nk = 0
    for i, x in enumerate(c.l):
        A(x)
        if i == cfg.get('e3clr', 3):
            if cfg.get('e3wide'):
                A(f's_mov_b64 exec, s[{M_E3W}:{M_E3W+1}]')
                A(f'buffer_store_dwordx4 v[{V_SENT4}:{V_SENT4+3}], v{V_E3ST}, {ws}, s{S_E3CL} offen sc1')
            else:
                A(f's_mov_b64 exec, s[{M_E1ST}:{M_E1ST+1}]')
                A(f'buffer_store_dwordx2 v[{V_SENT}:{V_SENT+1}], v{V_E3ST}, {ws}, s{S_E3CL} offen sc1')
            A('s_mov_b64 exec, -1')
        if i in (1, 5, 9, 13) and i < e3pos: A(kxl[4 + nk]); nk += 1
        if i == e3pos: A(e3_loads[0]); A(e3_loads[1])
    if e3pos >= len(c.l):
        if cfg.get('e3_sleep'): A(f's_sleep {cfg["e3_sleep"]}')
        A(e3_loads[0]); A(e3_loads[1])
    late = kxl[4 + nk:8]
    stamp(A, cfg, 9)
    l_p = A.lab('e3poll'); l_ok = A.lab('e3ok')
    A(f's_mov_b32 s{S_TO}, 0')
    A('s_waitcnt vmcnt(0)')
    check_regs(A, range(V_E3P, V_E3P + 8), 2, l_ok)
    A(f'{l_p}:')
    if cfg.get('stamps') or cfg.get('tot'): A('s_add_u32 s93, s93, 1')
    for x in e3_loads: A(x)
    A('s_waitcnt vmcnt(0)')
    check_regs(A, range(V_E3P, V_E3P + 8), 2, l_ok)
    retry_tail(A, l_p, abort, cfg.get('e3_retry_sleep', 0), None)
    A(f'{l_ok}:')
    stamp(A, cfg, 10)
    mfma32(A, v(V_E3A, 4), a(A_SEL, 4), v(V_E3P, 4), '0')
    mfma32(A, v(V_E3A, 4), a(A_SEL, 4), v(V_E3P + 4, 4), v(V_E3A, 4))
    for x in late: A(x)
    A.nop(8)
    A(f'''v_cvt_pk_bf16_f32 v2, v{V_E3A}, v{V_E3A+1}
    v_cvt_pk_bf16_f32 v3, v{V_E3A+2}, v{V_E3A+3}
    v_min_u32 v2, s{S_SENT}, v2
    v_min_u32 v3, s{S_SENT}, v3
    s_mov_b64 exec, s[{M_E1ST}:{M_E1ST+1}]
    buffer_store_dwordx2 v[2:3], v{V_E1ST}, {ws}, s{S_E1N} offen {st}
    buffer_store_dwordx2 v[{V_SENT}:{V_SENT+1}], v{V_E1ST}, {ws}, s{S_E1CL} offen {st}
    s_mov_b64 exec, -1''')
    l_e = A.lab('e')
    A(f's_branch {l_e}')
    A(f'{l_w3}:')
    hist_prev(A)
    hist_store(A)
    l_npf = A.lab('npf'); l_pf = A.lab('pf')
    A(f'''s_add_u32 s{S_D0}, s{S_STEP}, 3
    s_cmp_gt_u32 s{S_D0}, 63
    s_cbranch_scc1 {l_npf}
    s_cmp_ge_u32 s{S_KVF}, 4
    s_cbranch_scc1 {l_pf}''')
    kv_wait(A, S_D0, abort)
    A(f'''{l_pf}:
    s_mov_b64 exec, s[{M_L32}:{M_L32+1}]
    buffer_load_dword v{V_PFD}, v{V_PF}, {ws}, s{S_PFO} offen
    s_mov_b64 exec, -1
    {l_npf}:
    s_add_u32 s{S_D1}, s{S_STEP}, 4
    s_min_u32 s{S_D1}, s{S_D1}, 63
    s_lshl_b32 s{S_D1}, s{S_D1}, 2
    buffer_load_dword v{V_KVV}, v{V_FLKV}, {ws}, s{S_D1} offen sc1''')
    c = Cap(); vpx_compute(c)
    weave(A, c.l, kxl[4:8], start=2, every=6)
    if cfg.get('w3_sleep'):
        A(f's_sleep {cfg["w3_sleep"]}')
    A(f'{l_e}:')
    stamp(A, cfg, 11)
    A(f's_add_u32 s{S_STEP}, s{S_STEP}, 1')
    A(f's_branch {top}')
    A(f'{l_bd}:')
    A('s_barrier')
    A(f's_branch {P}_done')
    A(f'{l_last}:')
    l_l3 = A.lab('l3')
    A(f's_cmp_lg_u32 s{S_W}, 2')
    A(f's_cbranch_scc1 {l_l3}')
    hist_handoff(A)
    A('s_waitcnt lgkmcnt(0)')
    A('s_barrier')
    A(f's_branch {P}_done')
    A(f'{l_l3}:')
    A('s_barrier')
    hist_prev(A)
    hist_store(A)
    A('s_waitcnt vmcnt(0)')
    hist_signal(A)
    A(f's_branch {P}_done')

def gen_chain(cfg, name='chain_kernel'):
    P = 'CH'
    A = Asm(P)
    ws = f's[{S_WS}:{S_WS+3}]'
    if cfg.get('stamps') or cfg.get('tot'):
        A('s_memtime s[70:71]')
        A('s_memrealtime s[68:69]')
    A(f'''s_cmp_ge_u32 s2, 256
    s_cbranch_scc1 {P}_end
    s_load_dwordx2 s[46:47], s[0:1], {KA['ws']}
    s_getreg_b32 s{S_XCC}, hwreg(HW_REG_XCC_ID)
    s_and_b32 s{S_XCC}, s{S_XCC}, 7
    v_lshrrev_b32 v2, 6, v0
    v_and_b32 v1, 63, v0
    s_nop 0
    v_readfirstlane_b32 s{S_W}, v2
    s_waitcnt lgkmcnt(0)''')
    srd(A, S_WS, 46, 47, WS_BYTES)
    l_w = A.lab('rolewait'); l_poll = A.lab('rolepoll'); l_fast = A.lab('fast'); l_slow = A.lab('slow'); l_wr = A.lab('rolewr')
    A(f'''s_cmp_lg_u32 s{S_W}, 0
    s_cbranch_scc1 {l_w}
    s_mov_b64 exec, 1
    s_lshl_b32 s15, s{S_XCC}, 8
    s_add_u32 s15, s15, {CNT_OFF}
    v_mov_b32 v2, s15
    v_mov_b32 v3, 1
    buffer_atomic_add v3, v2, {ws}, 0 offen sc0
    s_waitcnt vmcnt(0)
    s_nop 0
    v_readfirstlane_b32 s{S_TK}, v3
    s_mov_b64 exec, -1
    v_lshlrev_b32 v2, 8, v1
    v_and_b32 v2, 0x7ff, v2
    v_add_u32 v2, {CNT_OFF}, v2
    v_mov_b32 v4, {PAR_OFF}
    s_mov_b32 s{S_TO}, 0
    {l_poll}:
    buffer_load_dword v3, v2, {ws}, 0 offen sc1
    buffer_load_dword v5, v4, {ws}, 0 offen sc1
    s_waitcnt vmcnt(0)
    s_nop 0''')
    for x in range(8):
        A(f'v_readlane_b32 s{48+x}, v3, {x}')
    A(f'''v_readfirstlane_b32 s{S_PAR}, v5
    s_nop 3
    s_min_u32 s15, s48, s49
    s_min_u32 s15, s15, s50
    s_min_u32 s15, s15, s51
    s_min_u32 s15, s15, s52
    s_min_u32 s15, s15, s53
    s_min_u32 s15, s15, s54
    s_min_u32 s15, s15, s55
    s_cmp_ge_u32 s15, 32
    s_cbranch_scc1 {l_fast}
    s_add_u32 s15, s48, s49
    s_add_u32 s15, s15, s50
    s_add_u32 s15, s15, s51
    s_add_u32 s15, s15, s52
    s_add_u32 s15, s15, s53
    s_add_u32 s15, s15, s54
    s_add_u32 s15, s15, s55
    s_cmp_ge_u32 s15, 256
    s_cbranch_scc1 {l_slow}
    s_sleep 1
    s_add_u32 s{S_TO}, s{S_TO}, 1
    s_cmp_lt_u32 s{S_TO}, {TIMEOUT}
    s_cbranch_scc1 {l_poll}
    s_mov_b32 s15, 999
    s_mov_b32 s{S_MODE}, 0
    s_branch {l_wr}
    {l_fast}:
    s_mov_b32 s{S_MODE}, 1
    s_lshl_b32 s15, s{S_XCC}, 5
    s_add_u32 s15, s15, s{S_TK}
    s_branch {l_wr}
    {l_slow}:
    s_mov_b32 s{S_MODE}, 0
    s_mov_b32 s15, s{S_TK}''')
    for x in range(7):
        A(f'''s_cmp_gt_u32 s{S_XCC}, {x}
        s_cselect_b32 s56, s{48+x}, 0
        s_add_u32 s15, s15, s56''')
    A(f'''{l_wr}:
    v_mov_b32 v2, {ROLE}
    v_mov_b32 v3, s15
    v_mov_b32 v4, s{S_MODE}
    v_mov_b32 v5, s{S_PAR}
    ds_write_b32 v2, v3
    ds_write_b32 v2, v4 offset:4
    ds_write_b32 v2, v5 offset:8
    s_waitcnt lgkmcnt(0)
    {l_w}:
    s_barrier
    v_mov_b32 v2, {ROLE}
    ds_read_b32 v3, v2
    ds_read_b32 v4, v2 offset:4
    ds_read_b32 v5, v2 offset:8
    s_waitcnt lgkmcnt(0)
    s_nop 0
    v_readfirstlane_b32 s15, v3
    v_readfirstlane_b32 s{S_MODE}, v4
    v_readfirstlane_b32 s{S_PAR}, v5
    s_nop 3
    s_and_b32 s{S_PAR}, s{S_PAR}, 1
    s_cmp_ge_u32 s15, 128
    s_cbranch_scc1 {P}_worker
    s_lshr_b32 s{S_G}, s15, 4
    s_and_b32 s{S_TT}, s15, 15''')
    A(f'''v_and_b32 v6, 15, v1
    v_lshrrev_b32 v7, 4, v1
    v_and_b32 v8, 7, v1
    v_cmp_gt_u32 vcc, 8, v6
    s_mov_b64 s[{M_I8}:{M_I8+1}], vcc
    v_cmp_gt_u32 vcc, 32, v1
    s_mov_b64 s[{M_L32}:{M_L32+1}], vcc
    s_mov_b32 s{S_C}, 0x3e0293ee
    s_mov_b32 s{S_SENT}, 0xfffffffe
    v_mov_b32 v{V_SENT}, -1
    v_mov_b32 v{V_SENT+1}, -1''')
    import struct
    c = struct.unpack('<I', struct.pack('<f', 128 ** -0.5 * 1.4426950408889634))[0]
    A(f's_mov_b32 s{S_C}, {hex(c)}')
    A(f'''s_mul_i32 s15, s{S_G}, {E1_G}
    s_add_u32 s15, s15, {E1_OFF}
    s_lshl_b32 s19, s{S_W}, 10
    v_lshlrev_b32 v2, 4, v1
    v_add_u32 v{V_E1W}, s19, v2
    v_add_u32 v{V_E1LD}, s15, v{V_E1W}
    v_add_u32 v{V_E1W}, {MEML}, v{V_E1W}
    v_lshlrev_b32 v3, 7, v7
    v_lshlrev_b32 v4, 4, v8
    v_lshlrev_b32 v{V_MEMR}, 4, v1
    v_add_u32 v{V_MEMR}, {MEML}, v{V_MEMR}''')
    A(f'''s_mul_i32 s19, s{S_TT}, 5
    s_lshl_b32 s45, s{S_W}, 1
    s_add_u32 s19, s19, s45
    s_lshl_b32 s19, s19, 7
    s_add_u32 s19, s19, s15
    v_lshrrev_b32 v2, 3, v6
    v_lshlrev_b32 v2, 7, v2
    v_lshlrev_b32 v3, 3, v7
    v_add3_u32 v{V_E1ST}, v2, v3, v4
    v_add_u32 v{V_E1ST}, s19, v{V_E1ST}
    s_mov_b64 s[{M_E1ST}:{M_E1ST+1}], s[{M_L32}:{M_L32+1}]
    s_cmp_eq_u32 s{S_W}, 2
    s_cbranch_scc0 {P}_e1m
    s_and_b64 s[{M_E1ST}:{M_E1ST+1}], s[{M_L32}:{M_L32+1}], s[{M_I8}:{M_I8+1}]
    {P}_e1m:''')
    A(f'''s_mul_i32 s15, s{S_G}, {E2_G}
    s_add_u32 s15, s15, {E2_OFF}
    s_and_b32 s19, s{S_W}, 1
    s_lshr_b32 s45, s{S_W}, 1
    v_lshrrev_b32 v2, 1, v7
    s_lshl_b32 s46, s19, 1
    v_add_u32 v2, s46, v2
    v_and_b32 v3, 1, v7
    v_lshlrev_b32 v3, 3, v3               ; (fg&1)*8
    v_lshlrev_b32 v4, 4, v6               ; i*16
    v_lshlrev_b32 v5, 8, v2
    v_add3_u32 v5, v5, v3, v4
    s_lshl_b32 s46, s45, 7                ; isK*128
    v_add_u32 v5, s46, v5                 ; inner F
    s_lshl_b32 s46, s{S_TT}, 10
    s_add_u32 s46, s46, s15
    v_add_u32 v{V_FST}, s46, v5
    v_lshlrev_b32 v9, 7, v2
    v_add3_u32 v9, v9, v3, v4
    s_lshl_b32 s46, s{S_TT}, 9
    s_add_u32 s46, s46, s15
    s_add_u32 s46, s46, 16384
    v_add_u32 v{V_FVST}, s46, v9
    s_lshl_b32 s46, s{S_G}, 4
    s_add_u32 s46, s46, s{S_TT}
    s_lshl_b32 s47, s46, 10
    s_add_u32 s47, s47, {HF_OFF}
    v_add_u32 v{V_HF}, s47, v5
    s_lshl_b32 s47, s46, 9
    s_add_u32 s47, s47, {HV_OFF}
    v_add_u32 v{V_HV}, s47, v9
    s_lshl_b32 s47, s46, 3                ; (16g+t)*8 = h_p*32 + (t&3)*8
    s_add_u32 s47, s47, {FLG_H}
    v_mov_b32 v{V_FLH}, s47
    s_lshl_b32 s47, s{S_G}, 8
    s_add_u32 s47, s47, {FLG_KV}
    v_mov_b32 v{V_FLKV}, s47
    v_subrev_u32 v{V_HF2}, 512, v{V_HF}
    v_subrev_u32 v{V_HV2}, 256, v{V_HV}
    v_lshlrev_b32 v{V_HIL}, 4, v1
    v_and_b32 v2, 1, v7
    v_cmp_eq_u32 vcc, 0, v2
    s_and_b64 s[{M_EV}:{M_EV+1}], vcc, s[{M_I8}:{M_I8+1}]
    v_mov_b32 v{V_KVV}, 0
    v_cmp_gt_u32 vcc, 16, v1
    s_and_b64 s[{M_E3W}:{M_E3W+1}], vcc, s[{M_E1ST}:{M_E1ST+1}]
    v_lshlrev_b32 v2, 4, v1
    s_lshl_b32 s46, s{S_W}, 12
    s_add_u32 s46, s46, s15
    v_add_u32 v{V_FLD}, s46, v2
    v_lshlrev_b32 v3, 7, v7
    v_lshlrev_b32 v4, 4, v8
    v_add_u32 v3, v3, v4
    s_lshl_b32 s46, s{S_W}, 11
    s_add_u32 s46, s46, s15
    s_add_u32 s46, s46, 16384
    v_add_u32 v{V_FVLD}, s46, v3''')
    A(f'''s_lshl_b32 s46, s{S_G}, 2
    s_add_u32 s46, s46, s{S_W}           ; h
    s_lshl_b32 s47, s46, 19
    v_add_u32 v{V_KX0}, s47, v2
    v_add_u32 v{V_KX1}, 4096, v{V_KX0}
    v_add_u32 v{V_VX0}, {VX_OFF}, v{V_KX0}
    v_add_u32 v{V_VX1}, {VX_OFF}, v{V_KX1}''')
    A(f'''v_and_b32 v2, 31, v1
    s_lshl_b32 s46, s{S_TT}, 5
    v_add_u32 v2, s46, v2
    v_lshrrev_b32 v3, 8, v2
    v_mul_u32_u24 v3, 0x1002, v3
    v_lshlrev_b32 v3, 12, v3
    v_lshrrev_b32 v4, 6, v2
    v_and_b32 v4, 3, v4
    s_lshl_b32 s46, s{S_G}, 2
    v_add_u32 v4, s46, v4
    v_lshlrev_b32 v4, 19, v4
    v_and_b32 v2, 63, v2
    v_lshlrev_b32 v2, 7, v2
    v_add3_u32 v{V_PF}, v2, v3, v4''')
    assert KX_OFF == 0 and VX_OFF == 1 << 24
    A(f'''v_lshlrev_b32 v{V_L16}, 4, v1
    s_lshl_b32 s46, s{S_W}, 13
    s_add_u32 s46, s46, {KXL}
    v_add_u32 v{V_KLR}, s46, v{V_L16}''')
    A(f'''s_mul_i32 s47, s{S_W}, 768
    s_add_u32 s47, s47, {RED}
    v_lshrrev_b32 v2, 1, v7
    v_lshlrev_b32 v2, 7, v2
    v_lshlrev_b32 v3, 4, v6
    v_and_b32 v4, 1, v7
    v_lshlrev_b32 v4, 3, v4
    v_add3_u32 v{V_REDW}, v2, v3, v4
    v_add_u32 v{V_REDW}, s47, v{V_REDW}
    v_mul_u32_u24 v2, 768, v7
    s_min_u32 s47, s{S_W}, 2
    s_lshl_b32 s47, s47, 8
    s_add_u32 s47, s47, {RED}
    v_add3_u32 v{V_REDR}, v2, v3, s47''')
    def phys(reg):
        A(f'''v_lshrrev_b32 v2, 13, v{reg}
        v_lshlrev_b32 v2, 14, v2
        v_and_b32 v{reg}, 0x1fff, v{reg}
        v_or_b32 v{reg}, v2, v{reg}
        v_add_u32 v{reg}, s45, v{reg}''')
    A(f'''s_lshl_b32 s45, s{S_PAR}, 13
    s_add_u32 s45, s45, {E3_OFF}
    s_mul_i32 s46, s{S_TT}, 5120
    s_mul_i32 s47, s{S_G}, 640
    s_add_u32 s47, s47, s46
    s_min_u32 s15, s{S_W}, 2
    s_lshl_b32 s15, s15, 8
    s_add_u32 s47, s47, s15
    v_lshlrev_b32 v3, 4, v6
    v_and_b32 v4, 1, v7
    v_lshlrev_b32 v4, 3, v4
    v_add3_u32 v{V_E3ST}, v3, v4, s47
    v_min_u32 v{V_E3ST}, 81912, v{V_E3ST}''')
    phys(V_E3ST)
    A(f'''s_cmp_eq_u32 s{S_W}, 2
    s_cselect_b32 s47, 7, 15
    v_and_b32 v3, s47, v6
    s_min_u32 s47, s{S_W}, 2
    s_lshl_b32 s47, s47, 4
    v_add_u32 v3, s47, v3
    v_lshlrev_b32 v3, 4, v3
    v_mul_u32_u24 v4, 640, v7
    v_add3_u32 v{V_E3L0}, v3, v4, s46
    v_add_u32 v{V_E3L1}, 2560, v{V_E3L0}''')
    phys(V_E3L0); phys(V_E3L1)
    A(f'''v_mov_b32 v2, 0xff800000
    v_mov_b32 v3, 0
    v_cndmask_b32 v{V_CINIT}, v3, v2, s[{M_L32}:{M_L32+1}]
    v_mov_b32 v{V_CINIT+1}, v{V_CINIT}
    v_mov_b32 v{V_CINIT+2}, v{V_CINIT}
    v_mov_b32 v{V_CINIT+3}, v{V_CINIT}
    v_mov_b32 v2, 0x3f803f80''')
    for r in range(4):
        A(f'v_accvgpr_write_b32 a{A_ONE+r}, v2')
    A(f'''v_and_b32 v3, 1, v6
    v_lshlrev_b32 v3, 4, v3
    v_mov_b32 v4, 0x3f80
    v_lshlrev_b32 v4, v3, v4
    v_lshrrev_b32 v5, 1, v6''')
    for r in range(4):
        A(f'''v_cmp_eq_u32 vcc, {r}, v5
        s_nop 1
        v_cndmask_b32 v2, 0, v4, vcc
        v_accvgpr_write_b32 a{A_SEL+r}, v2''')
    A(f'''s_load_dwordx2 s[46:47], s[0:1], {KA['Wq']}
    s_load_dwordx2 s[48:49], s[0:1], {KA['Wk']}
    s_load_dwordx2 s[50:51], s[0:1], {KA['Wv']}
    s_load_dwordx2 s[52:53], s[0:1], {KA['Wo']}
    s_load_dwordx2 s[54:55], s[0:1], {KA['mem0']}
    s_lshr_b32 s15, s{S_TT}, 2
    s_lshl_b32 s19, s{S_G}, 2
    s_add_u32 s15, s15, s19              ; h_p
    s_lshl_b32 s15, s15, 8               ; h_p*256 bytes
    s_and_b32 s19, s{S_TT}, 3
    s_lshl_b32 s19, s19, 6
    s_add_u32 s15, s15, s19              ; + qd*64
    v_lshrrev_b32 v2, 2, v0
    v_lshlrev_b32 v2, 13, v2
    v_and_b32 v3, 3, v0
    v_lshlrev_b32 v3, 4, v3
    v_add3_u32 v2, v2, v3, s15
    v_lshlrev_b32 v3, 4, v0
    v_add_u32 v3, {STAGE}, v3
    s_waitcnt lgkmcnt(0)''')
    for pi, sp in enumerate((46, 48, 50)):
        srd(A, S_T, sp, sp + 1, 640 * 8192)
        A('s_mov_b32 s19, 0')
        for r in range(10):
            A(f'buffer_load_dwordx4 {v(128+pi*40+r*4,4)}, v2, s[{S_T}:{S_T+3}], s19 offen')
            if r < 9:
                A(f's_add_u32 s19, s19, {64*8192}')
    A('v_mov_b32 v125, v3')
    srd(A, S_T, 52, 53, 4096 * 1280)
    A(f'''s_lshl_b32 s15, s{S_G}, 2
    s_add_u32 s15, s15, s{S_W}
    s_mul_i32 s15, s15, {128*1280}
    s_mul_i32 s19, s{S_TT}, 80
    s_add_u32 s15, s15, s19
    s_mul_i32 s45, s{S_W}, {128*96}
    s_add_u32 s45, s45, {STAGE}
    s_mov_b32 s56, 52429''')
    for r in range(10):
        A(f'''v_add_u32 v2, {r*64}, v1
        v_mul_lo_u32 v3, v2, s56
        v_lshrrev_b32 v3, 18, v3
        v_mul_u32_u24 v4, 5, v3
        v_sub_u32 v4, v2, v4
        v_lshlrev_b32 v4, 4, v4
        v_mul_u32_u24 v5, 1280, v3
        v_add3_u32 v5, v5, v4, s15
        buffer_load_dwordx4 {v(64+r*4,4)}, v5, s[{S_T}:{S_T+3}], 0 offen
        v_mul_u32_u24 v5, 96, v3
        v_add3_u32 v{110+r}, v5, v4, s45''')
    A('v_add_u32 v4, 0x10000, v125')
    for pi in range(3):
        A(f's_waitcnt vmcnt({10 + (2-pi)*10})')
        for r in range(10):
            o = pi * 40960 + r * 4096
            A(f'ds_write_b128 v125, {v(128+pi*40+r*4,4)} offset:{o}' if o < 65536 else f'ds_write_b128 v4, {v(128+pi*40+r*4,4)} offset:{o-65536}')
    A('s_waitcnt lgkmcnt(0)')
    A('s_barrier')
    A(f'''v_lshrrev_b32 v2, 2, v6            ; r4
    v_lshrrev_b32 v3, 1, v7
    v_lshlrev_b32 v3, 4, v3                ; 16*(g>>1)
    v_add_u32 v2, v2, v3
    v_and_b32 v3, 1, v7
    v_lshlrev_b32 v3, 2, v3                ; 4*(g&1)
    v_add_u32 v2, v2, v3
    v_lshlrev_b32 v2, 6, v2
    v_and_b32 v3, 3, v1
    v_lshlrev_b32 v3, 3, v3
    s_and_b32 s15, s{S_W}, 1
    s_lshl_b32 s15, s15, 5
    s_lshr_b32 s19, s{S_W}, 1
    s_mul_i32 s19, s19, 40960
    s_add_u32 s19, s19, s15
    s_add_u32 s19, s19, {STAGE}
    v_add3_u32 v4, v2, v3, s19             ; q/k panel
    s_add_u32 s15, s15, {STAGE + 2*40960}
    v_add3_u32 v5, v2, v3, s15             ; v panel''')
    for blk in range(10):
        tmp = 128
        plan = []
        for mi, (areg, wb) in enumerate((('v4', A_WA), ('v5', A_WV))):
            for hh in range(2):
                for t in range(2):
                    r = tmp + ((mi * 2 + hh) * 2 + t) * 2
                    A(f'ds_read_b64_tr_b16 v[{r}:{r+1}], {areg} offset:{(64*blk + 32*hh + 8*t)*64}')
                    base = wb + blk * 8 + hh * 4
                    plan.append((base + t, r)); plan.append((base + 2 + t, r + 1))
        A('s_waitcnt lgkmcnt(0)')
        for (ar, vr) in plan:
            A(f'v_accvgpr_write_b32 a{ar}, v{vr}')
    A('s_barrier')
    A(f'''v_mov_b32 v2, 0
    v_mov_b32 v3, 0
    v_mov_b32 v4, 0
    v_mov_b32 v5, 0
    v_mul_u32_u24 v9, 96, v1
    v_add_u32 v9, s45, v9
    ds_write_b128 v9, v[2:5] offset:80
    ds_write_b128 v9, v[2:5] offset:{80+64*96}
    s_waitcnt vmcnt(0)''')
    for r in range(10):
        A(f'ds_write_b128 v{110+r}, {v(64+r*4,4)}')
    A(f'''s_waitcnt lgkmcnt(0)
    v_lshrrev_b32 v2, 2, v6
    v_lshlrev_b32 v3, 3, v7
    v_add_u32 v2, v2, v3
    v_mul_u32_u24 v2, 96, v2
    v_and_b32 v3, 3, v1
    v_lshlrev_b32 v3, 3, v3
    v_add3_u32 v4, v2, v3, s45''')
    for ks in range(4):
        for tau in range(3):
            for hf in range(2):
                A(f'ds_read_b64_tr_b16 {a(A_WO+(ks*3+tau)*4+hf*2,2)}, v4 offset:{(32*ks+4*hf)*96 + tau*32}')
        A('s_waitcnt lgkmcnt(0)')
    srd(A, S_T, 54, 55, 8 * 1280)
    A(f'''v_mul_u32_u24 v2, 1280, v8
    v_lshrrev_b32 v3, 3, v1
    v_lshlrev_b32 v3, 4, v3
    s_lshl_b32 s15, s{S_W}, 7
    v_add3_u32 v2, v2, v3, s15
    buffer_load_dwordx4 {v(V_E1P,4)}, v2, s[{S_T}:{S_T+3}], 0 offen
    buffer_load_dwordx4 {v(V_E1P+4,4)}, v2, s[{S_T}:{S_T+3}], 0 offen offset:384
    buffer_load_dwordx4 {v(V_E1P+8,4)}, v2, s[{S_T}:{S_T+3}], 0 offen offset:768
    v_mov_b32 v{V_E1Q}, 0
    v_mov_b32 v{V_E1Q+1}, 0
    v_mov_b32 v{V_E1Q+2}, 0
    v_mov_b32 v{V_E1Q+3}, 0
    s_cmp_lg_u32 s{S_W}, 0
    s_cbranch_scc1 {P}_m0
    buffer_load_dwordx4 {v(V_E1Q,4)}, v2, s[{S_T}:{S_T+3}], 0 offen offset:1152
    {P}_m0:''')
    for sg in range(3):
        A(f's_mov_b32 s{S_D0}, {sg}')
        kv_wait(A, S_D0, P + '_abort')
    load_kx(A, '0')
    load_vx(A, '0')
    A(f'''s_mov_b64 exec, s[{M_L32}:{M_L32+1}]
    s_mov_b32 s19, 8192
    buffer_load_dword v{V_PFD}, v{V_PF}, {ws}, s19 offen
    buffer_load_dword v{V_PFD}, v{V_PF}, {ws}, 0 offen
    s_mov_b64 exec, -1''')
    A('s_waitcnt vmcnt(0)')
    vpx_compute(A)
    A(f's_mov_b32 s{S_STEP}, 0')
    A(f's_mov_b32 s{S_KVF}, 0')
    A(f'''v_and_b32 v6, 15, v1
    v_lshrrev_b32 v7, 4, v1
    v_mov_b32 v2, 0xeeee
    v_mov_b32 v3, 0x4444
    v_cndmask_b32 v{V_IDX}, v2, v3, s[{M_I8}:{M_I8+1}]
    v_and_b32 v2, 1, v7
    v_lshlrev_b32 v2, 2, v2
    v_sub_u32 v2, v6, v2                    ; t = n - 4*(kg&1)
    v_and_b32 v3, 1, v2
    v_lshlrev_b32 v3, 4, v3
    v_mov_b32 v4, 0x3f80
    v_lshlrev_b32 v4, v3, v4
    v_lshrrev_b32 v5, 1, v2
    v_cmp_eq_u32 vcc, 0, v5
    s_nop 1
    v_cndmask_b32 v3, 0, v4, vcc
    v_accvgpr_write_b32 a{A_SUM}, v3
    v_cmp_eq_u32 vcc, 1, v5
    s_nop 1
    v_cndmask_b32 v3, 0, v4, vcc
    v_accvgpr_write_b32 a{A_SUM+1}, v3''')
    for r in range(4): A(f'v_mov_b32 v{V_SENT4+r}, -1')
    if cfg.get('stamps') or cfg.get('tot'):
        for i in range(20):
            A(f's_mov_b32 s{74+i}, 0')
        A('''s_memtime s[56:57]
        s_memrealtime s[62:63]
        s_waitcnt lgkmcnt(0)
        s_mov_b32 s58, s56
        s_mov_b32 s72, s56
        s_mov_b32 s64, s62
        s_sub_u32 s66, s56, s70''')
    A('s_barrier')
    A(f's_cmp_eq_u32 s{S_MODE}, 0')
    A(f's_cbranch_scc1 {P}_slowloop')
    gen_loop(A, cfg, True, P)
    A(f'{P}_slowloop:')
    gen_loop(A, cfg, False, P)
    A(f'{P}_abort:')
    A(f'''s_load_dwordx2 s[46:47], s[0:1], {KA['dbg']}
    s_waitcnt lgkmcnt(0)
    s_mov_b64 exec, 1
    v_mov_b32 v2, 0
    s_or_b32 s15, s{S_STEP}, 0xdead0000
    v_mov_b32 v3, s15
    global_store_dword v2, v3, s[46:47]
    s_mov_b64 exec, -1''')
    A(f'{P}_done:')
    if cfg.get('stamps') or cfg.get('tot'):
        A('''s_memtime s[56:57]
        s_waitcnt lgkmcnt(0)
        s_sub_u32 s67, s56, s72''')
        A(f'''s_lshl_b32 s15, s{S_G}, 4
        s_add_u32 s15, s15, s{S_TT}
        s_lshl_b32 s15, s15, 2
        s_add_u32 s15, s15, s{S_W}
        s_lshl_b32 s15, s15, 7
        s_add_u32 s15, s15, {STAMP_OFF}
        s_mov_b64 exec, 1
        v_mov_b32 v2, s15
        s_memrealtime s[56:57]
        s_waitcnt lgkmcnt(0)
        s_mov_b32 s88, s68
        s_mov_b32 s89, s56
        s_sub_u32 s86, s56, s64
        v_mov_b32 v40, s66
        v_mov_b32 v41, s67''')
        for i in range(22):
            A(f'v_mov_b32 v{42+i}, s{74+i}')
        for q in range(6):
            A(f'buffer_store_dwordx4 v[{40+4*q}:{43+4*q}], v2, {ws}, 0 offen offset:{16*q}')
    A('s_waitcnt vmcnt(0)')
    A(f's_branch {P}_end')
    A(f'{P}_worker:')
    if cfg.get('workers'):
        cfg['workers'](A, P)
    A(f'{P}_end:')
    A('s_endpgm')
    return kernel_text(name, A.text(), 512, 96, 256)
```

```python
from common import *
XBUF = 45056
S_WS = 4
S_WAVE = 8
S_WSRD = 16
S_XSRD = 20
S_P, S_SEG, S_STEP, S_OUT, S_T0, S_T1, S_XO, S_BUF, S_M0B, S_FLG, S_PREV, S_PREV2 = 24, 25, 26, 27, 28, 29, 30, 31, 32, 33, 34, 35
V_XO = 8
V_BR = 19
V_ST = 20
V_ACC = 24
V_B = 56
V_P = 80
V_WB = 96
NB = 6
def wreg(panel, ks):
    if panel == 0: return a(ks * 4, 4)
    if ks < 24: return a(160 + ks * 4, 4)
    return v(V_WB + (ks - 24) * 4, 4)
def wreg2(panel, ks, hf):
    if panel == 0: return a(ks * 4 + hf * 2, 2)
    if ks < 24: return a(160 + ks * 4 + hf * 2, 2)
    return v(V_WB + (ks - 24) * 4 + hf * 2, 2)

def wgemm_task(A):
    ws = f's[{S_WS}:{S_WS+3}]'
    lk = A.lab('mk'); lv = A.lab('mv'); lj = A.lab('mj')
    A(f'''s_lshr_b32 s{S_T0}, s{S_P}, 4
    s_cmp_eq_u32 s{S_T0}, 0
    s_cbranch_scc1 {lk}
    s_cmp_eq_u32 s{S_T0}, 1
    s_cbranch_scc1 {lv}
    s_load_dwordx2 s[36:37], s[0:1], {KA['Wq']}
    s_mov_b32 s{S_OUT}, {QX_OFF}
    s_mov_b32 s{S_FLG}, {FLG_Q}
    s_branch {lj}
    {lk}:
    s_load_dwordx2 s[36:37], s[0:1], {KA['Wk']}
    s_mov_b32 s{S_OUT}, {KX_OFF}
    s_mov_b32 s{S_FLG}, {FLG_KV}
    s_branch {lj}
    {lv}:
    s_load_dwordx2 s[36:37], s[0:1], {KA['Wv']}
    s_mov_b32 s{S_OUT}, {VX_OFF}
    s_mov_b32 s{S_FLG}, {FLG_KV}
    {lj}:
    s_load_dwordx2 s[38:39], s[0:1], {KA['x']}
    s_and_b32 s{S_T0}, s{S_P}, 15
    s_lshl_b32 s{S_T0}, s{S_T0}, 1          ; h0
    s_lshr_b32 s{S_T1}, s{S_T0}, 2          ; g
    s_lshl_b32 s{S_T1}, s{S_T1}, 8          ; g*64*4
    s_add_u32 s{S_FLG}, s{S_FLG}, s{S_T1}
    s_waitcnt lgkmcnt(0)''')
    srd(A, S_WSRD, 36, 37, 640 * 8192)
    srd(A, S_XSRD, 38, 39, 2048 * 1280)
    A(f'''s_lshl_b32 s{S_T1}, s{S_T0}, 19
    s_add_u32 s{S_OUT}, s{S_OUT}, s{S_T1}
    s_lshl_b32 s{S_T1}, s{S_WAVE}, 10
    s_add_u32 s{S_OUT}, s{S_OUT}, s{S_T1}
    v_and_b32 v2, 31, v1
    v_lshrrev_b32 v3, 4, v2
    v_lshlrev_b32 v3, 12, v3
    v_and_b32 v4, 15, v1
    v_lshlrev_b32 v4, 4, v4
    v_lshrrev_b32 v5, 5, v1
    v_lshlrev_b32 v6, 8, v5
    v_add3_u32 v{V_ST}, v3, v4, v6
    v_mul_u32_u24 v3, 1296, v2
    v_lshlrev_b32 v5, 4, v5
    v_add_u32 v{V_BR}, v3, v5
    s_mov_b32 s{S_T1}, 51782''')
    for r in range(11):
        A(f'''v_add_u32 v2, {r*256}, v0
        v_mul_lo_u32 v3, v2, s{S_T1}
        v_lshrrev_b32 v3, 22, v3
        v_mul_u32_u24 v4, 81, v3
        v_sub_u32 v4, v2, v4
        v_min_u32 v4, 79, v4
        v_min_u32 v3, 31, v3
        v_mul_u32_u24 v3, 1280, v3
        v_lshlrev_b32 v4, 4, v4
        v_add_u32 v{V_XO+r}, v3, v4''')
    A(f'''v_lshrrev_b32 v2, 5, v0
    v_lshlrev_b32 v2, 13, v2
    v_and_b32 v3, 31, v0
    v_lshlrev_b32 v3, 4, v3
    s_lshl_b32 s{S_T1}, s{S_T0}, 8
    v_add3_u32 v2, v2, v3, s{S_T1}
    s_lshl_b32 s{S_M0B}, s{S_WAVE}, 10
    v_lshrrev_b32 v3, 4, v1
    v_lshrrev_b32 v4, 1, v3
    v_lshlrev_b32 v4, 3, v4
    v_and_b32 v5, 15, v1
    v_lshrrev_b32 v5, 2, v5
    v_add_u32 v4, v4, v5
    v_lshlrev_b32 v4, 9, v4                 ; (8hi + r4)*512
    v_and_b32 v3, 1, v3
    v_lshlrev_b32 v3, 5, v3
    v_and_b32 v5, 3, v1
    v_lshlrev_b32 v5, 3, v5
    v_add3_u32 v4, v4, v3, v5
    s_lshl_b32 s{S_T1}, s{S_WAVE}, 6
    v_add_u32 v4, s{S_T1}, v4
    v_add_u32 v5, 40960, v4''')
    def stage(cc):
        for r in range(10):
            so = (cc * 80 + r * 8) * 8192
            A(f'''s_mov_b32 s{S_T1}, {so}
            s_add_u32 m0, s{S_M0B}, {(cc % 2) * 40960 + r * 4096}
            s_nop 0
            buffer_load_dwordx4 v2, s[{S_WSRD}:{S_WSRD+3}], s{S_T1} offen lds''')
    stage(0)
    for cc in range(8):
        if cc + 1 < 8:
            stage(cc + 1)
            A('s_waitcnt vmcnt(10)')
        else:
            A('s_waitcnt vmcnt(0)')
        A('s_barrier')
        ar = 'v4' if cc % 2 == 0 else 'v5'
        n = 0
        for ks in range(5):
            for panel in range(2):
                for hf in range(2):
                    A(f'ds_read_b64_tr_b16 {wreg2(panel, cc*5+ks, hf)}, {ar} offset:{(16*ks+4*hf)*512 + panel*256}')
                    n += 1
            if ks % 3 == 2: A('s_waitcnt lgkmcnt(0)')
        A('s_waitcnt lgkmcnt(0)')
        A('s_barrier')
    def issue_x(bufreg):
        for r in range(11):
            A(f'''s_add_u32 m0, s{bufreg}, {r * 4096}
            s_nop 0
            buffer_load_dwordx4 v{V_XO+r}, s[{S_XSRD}:{S_XSRD+3}], s{S_XO} offen lds''')
    def signal(segreg):
        l = A.lab('sg')
        A(f'''s_cmp_lg_u32 s{S_WAVE}, 0
        s_cbranch_scc1 {l}
        s_lshl_b32 s{S_T1}, s{segreg}, 2
        s_add_u32 s{S_T1}, s{S_T1}, s{S_FLG}
        v_mov_b32 v2, s{S_T1}
        v_mov_b32 v3, 1
        s_mov_b64 exec, 1
        buffer_atomic_add v3, v2, {ws}, 0 offen sc1
        s_mov_b64 exec, -1
        {l}:''')
    A(f'''s_mul_i32 s{S_XO}, s{S_SEG}, 40960
    s_mov_b32 s{S_BUF}, s{S_M0B}
    s_mov_b32 s{S_PREV}, -1
    s_mov_b32 s{S_PREV2}, -1''')
    issue_x(S_BUF)
    A('s_waitcnt vmcnt(0)')
    top = A.lab('top'); nonext = A.lab('nonext'); nosig = A.lab('nosig'); eager = A.lab('eager'); cont = A.lab('cont')
    A(f'{top}:')
    A('s_waitcnt vmcnt(4)')
    A('s_barrier')
    A(f's_cmp_eq_u32 s{S_PREV2}, -1')
    A(f's_cbranch_scc1 {nosig}')
    signal(S_PREV2)
    A(f'{nosig}:')
    A(f'''s_sub_u32 s{S_T0}, s{S_BUF}, s{S_M0B}
    v_add_u32 v7, s{S_T0}, v{V_BR}
    s_xor_b32 s{S_T0}, s{S_T0}, {XBUF}
    s_add_u32 s{S_BUF}, s{S_T0}, s{S_M0B}
    s_add_u32 s{S_T0}, s{S_SEG}, s{S_STEP}
    s_min_u32 s{S_T0}, s{S_T0}, 63
    s_mul_i32 s{S_XO}, s{S_T0}, 40960''')
    dma = []
    for r in range(11):
        dma.append([f's_add_u32 m0, s{S_BUF}, {r * 4096}', 's_nop 0',
                    f'buffer_load_dwordx4 v{V_XO+r}, s[{S_XSRD}:{S_XSRD+3}], s{S_XO} offen lds'])
    for k in range(NB - 1):
        A(f'ds_read_b128 {v(V_B + k*4, 4)}, v7 offset:{k*32}')
    for ks in range(40):
        nxt = ks + NB - 1
        if nxt < 40:
            A(f'ds_read_b128 {v(V_B + (nxt % NB)*4, 4)}, v7 offset:{nxt*32}')
            A(f's_waitcnt lgkmcnt({NB-1})')
        else:
            A(f's_waitcnt lgkmcnt({39 - ks})')
        for panel in range(2):
            acc = v(V_ACC + panel * 16, 16)
            A(f'v_mfma_f32_32x32x16_bf16 {acc}, {wreg(panel, ks)}, {v(V_B + (ks % NB)*4, 4)}, {"0" if ks == 0 else acc}')
        if ks % 3 == 1 and dma:
            for x in dma.pop(0): A(x)
    assert not dma
    A.nop(12)
    A(f'''s_lshl_b32 s{S_T0}, s{S_SEG}, 13
    s_add_u32 s{S_T0}, s{S_T0}, s{S_OUT}
    s_add_u32 s{S_T1}, s{S_T0}, {1 << 19}''')
    for panel in range(2):
        ac = V_ACC + panel * 16
        pp = V_P if panel == 0 else V_P + 8
        for q in range(4):
            A(f'v_cvt_pk_bf16_f32 v{pp+2*q}, v{ac+4*q}, v{ac+4*q+1}')
            A(f'v_cvt_pk_bf16_f32 v{pp+2*q+1}, v{ac+4*q+2}, v{ac+4*q+3}')
        A('s_nop 1')
        for m in range(2):
            A(f'v_permlane32_swap_b32 v{pp+4*m}, v{pp+4*m+2}')
            A(f'v_permlane32_swap_b32 v{pp+4*m+1}, v{pp+4*m+3}')
        so = S_T0 if panel == 0 else S_T1
        A('s_nop 0')
        A(f'buffer_store_dwordx4 {v(pp,4)}, v{V_ST}, {ws}, s{so} offen sc1')
        A(f'buffer_store_dwordx4 {v(pp+4,4)}, v{V_ST}, {ws}, s{so} offen offset:512 sc1')
    A(f'''s_cmp_eq_u32 s{S_PREV}, -1
    s_cbranch_scc0 {cont}
    s_waitcnt vmcnt(0)
    s_barrier''')
    signal(S_SEG)
    A(f'''s_mov_b32 s{S_PREV}, -2
    s_branch {cont}_2
    {cont}:
    s_mov_b32 s{S_PREV2}, s{S_PREV}
    s_mov_b32 s{S_PREV}, s{S_SEG}
    s_cmp_eq_u32 s{S_PREV2}, -2
    s_cselect_b32 s{S_PREV2}, -1, s{S_PREV2}
    {cont}_2:
    s_add_u32 s{S_SEG}, s{S_SEG}, s{S_STEP}
    s_cmp_lt_u32 s{S_SEG}, 64
    s_cbranch_scc1 {top}
    s_waitcnt vmcnt(0)
    s_barrier''')
    for reg in (S_PREV2, S_PREV):
        l = A.lab('fin')
        A(f's_cmp_gt_u32 s{reg}, 63')
        A(f's_cbranch_scc1 {l}')
        signal(reg)
        A(f'{l}:')
```

```python
import sys
sys.path.insert(0,'gen')
from common import *
import chain, attn, ssm, wgemm

MAIN = 'concat_heads__ssm_conv_s4__memory_aug_recurrent_mem_tr__prompt_kernel'
TASK_LDS = 143296

N_Q, N_WOF, N_SSM = 128, 32, 160
T_Q0 = 0
T_WOF0 = T_Q0 + N_Q
T_SSM0 = T_WOF0 + N_WOF
T_AO0 = T_SSM0 + N_SSM
NBIG = 26
SMALL0 = 2 * NBIG
N_R1 = 16 + (NBIG - 1) * 24
N_R1B = 8
N_R2 = 48 * (64 - SMALL0)
N_TASKS = T_AO0 + N_R1 + N_R2 + N_R1B

def gen_prep(cfg, name='prep_kernel'):
    P = 'PR'
    A = Asm(P)
    ws = 's[4:7]'
    NW = 32
    A(f'''s_cmp_ge_u32 s2, {NW}
    s_cbranch_scc1 {P}_end
    s_load_dwordx2 s[26:27], s[0:1], {KA['ws']}
    v_lshrrev_b32 v2, 6, v0
    s_nop 0
    v_readfirstlane_b32 s8, v2
    s_waitcnt lgkmcnt(0)''')
    srd(A, 4, 26, 27, WS_BYTES)
    A('''v_mov_b32 v4, -1
    v_mov_b32 v5, -1
    v_mov_b32 v6, -1
    v_mov_b32 v7, -1
    v_lshlrev_b32 v2, 4, v0''')
    for base, nbytes in ((E1_OFF, 512 * 1024), (E2_OFF, 1 << 20), (E3_OFF, 672 * 1024)):
        rounds = nbytes // 4096
        lp = A.lab('clr')
        A(f'''s_lshl_b32 s26, s2, 12
        s_add_u32 s26, s26, {base}
        s_mov_b32 s29, s2
        {lp}:
        buffer_store_dwordx4 v[4:7], v2, {ws}, s26 offen
        s_add_u32 s26, s26, {NW*4096}
        s_add_u32 s29, s29, {NW}
        s_cmp_lt_u32 s29, {rounds}
        s_cbranch_scc1 {lp}''')
    l1 = A.lab('nz'); lz = A.lab('z')
    NCH = (8192 + FLG_BYTES) // 4096
    assert NCH <= NW
    A(f'''s_cmp_ge_u32 s2, {NCH}
    s_cbranch_scc1 {l1}
    s_cmp_eq_u32 s2, 1
    s_cbranch_scc1 {l1}
    v_mov_b32 v4, 0
    v_mov_b32 v5, 0
    v_mov_b32 v6, 0
    v_mov_b32 v7, 0
    s_lshl_b32 s26, s2, 12
    s_add_u32 s26, s26, {CNT_OFF}
    buffer_store_dwordx4 v[4:7], v2, {ws}, s26 offen
    {l1}:
    s_cmp_lg_u32 s2, 1
    s_cbranch_scc1 {P}_end
    s_cmp_lg_u32 s8, 0
    s_cbranch_scc1 {P}_end
    s_getreg_b32 s29, hwreg(HW_REG_XCC_ID)
    s_and_b32 s29, s29, 7
    s_mov_b64 exec, 1
    v_mov_b32 v4, 0
    s_mov_b32 s30, 0
    s_mov_b32 s31, 0''')
    CAL = E3_OFF + (1 << 20)
    NS = 4
    for k in range(NS):
        for c in range(2):
            A(f'''v_mov_b32 v2, {CAL + k*16384 + c*8192 + k*256}
            buffer_store_dword v4, v2, {ws}, 0 offen sc1''')
    A('s_waitcnt vmcnt(0)')
    for k in range(NS):
        for c in range(2):
            A(f'''v_mov_b32 v2, {CAL + k*16384 + c*8192 + k*256}
            s_memtime s[32:33]
            s_waitcnt lgkmcnt(0)
            buffer_load_dword v5, v2, {ws}, 0 offen sc1
            s_waitcnt vmcnt(0)
            s_memtime s[34:35]
            s_waitcnt lgkmcnt(0)
            s_sub_u32 s34, s34, s32
            s_add_u32 s{30+c}, s{30+c}, s34''')
    A(f'''s_cmp_lt_u32 s31, s30
    s_cselect_b32 s26, 1, 0
    s_lshr_b32 s29, s29, 2
    s_xor_b32 s26, s26, s29
    v_mov_b32 v4, s26
    v_mov_b32 v2, {PAR_OFF}
    buffer_store_dword v4, v2, {ws}, 0 offen
    s_waitcnt vmcnt(0)''')
    A(f'{P}_end:')
    A('s_endpgm')
    return kernel_text(name, A.text(), 16, 48, 16)

LOG = False
TLOG = STAMP_OFF + 262144
def tlog(A, idx_expr_sreg, slot):
    if not LOG: return
    l = A.lab('tl')
    A(f'''s_cmp_lg_u32 s8, 0
    s_cbranch_scc1 {l}
    s_memrealtime s[46:47]
    s_waitcnt lgkmcnt(0)
    s_lshl_b32 s47, s{idx_expr_sreg}, 3
    s_add_u32 s47, s47, {TLOG + slot*4}
    v_mov_b32 v2, s47
    v_mov_b32 v3, s46
    s_mov_b64 exec, 1
    buffer_store_dword v3, v2, s[4:7], 0 offen
    s_mov_b64 exec, -1
    {l}:''')

def workers(A, P):
    top = A.lab('wtop'); nw = A.lab('wnw')
    lq = A.lab('wq'); lw = A.lab('wwof'); ls = A.lab('wssm'); lao = A.lab('wao')
    A(f'''s_mov_b32 s8, s14
    s_sub_u32 s15, s15, 128
    s_lshr_b32 s{wgemm.S_P}, s15, 2
    s_and_b32 s{wgemm.S_SEG}, s15, 3
    s_mov_b32 s{wgemm.S_STEP}, 4''')
    A('s_add_u32 s48, s15, 1600')
    tlog(A, 48, 0)
    lg = A.lab('wgemm')
    A(f'{lg}:')
    wgemm.wgemm_task(A)
    A(f'{top}:')
    tlog(A, 48, 1)
    A(f'''s_cmp_lg_u32 s8, 0
    s_cbranch_scc1 {nw}
    s_mov_b64 exec, 1
    v_mov_b32 v2, {TASKCTR}
    v_mov_b32 v3, 1
    buffer_atomic_add v3, v2, s[4:7], 0 offen sc0
    s_waitcnt vmcnt(0)
    v_mov_b32 v2, {TASK_LDS}
    ds_write_b32 v2, v3
    s_waitcnt lgkmcnt(0)
    s_mov_b64 exec, -1
    {nw}:
    s_barrier
    v_mov_b32 v2, {TASK_LDS}
    ds_read_b32 v3, v2
    s_waitcnt lgkmcnt(0)
    s_nop 0
    v_readfirstlane_b32 s13, v3
    s_nop 3
    s_barrier
    s_cmp_ge_u32 s13, {N_TASKS}
    s_cbranch_scc1 {P}_end
    s_mov_b32 s48, s13''')
    tlog(A, 48, 0)
    A(f'''    s_cmp_ge_u32 s13, {T_AO0}
    s_cbranch_scc1 {lao}
    s_cmp_ge_u32 s13, {T_SSM0}
    s_cbranch_scc1 {ls}
    s_cmp_ge_u32 s13, {T_WOF0}
    s_cbranch_scc1 {lw}
    s_lshr_b32 s{wgemm.S_P}, s13, 3
    s_add_u32 s{wgemm.S_P}, s{wgemm.S_P}, 32
    s_and_b32 s{wgemm.S_SEG}, s13, 7
    s_mov_b32 s{wgemm.S_STEP}, 8
    s_branch {lg}''')
    A(f'{lw}:')
    A(f's_sub_u32 s10, s13, {T_WOF0}')
    A('s_lshl_b32 s10, s10, 2')
    for q in range(4):
        A(f's_add_u32 s9, s10, {q}')
        attn.gen_wof_body(A, 9, P, sc1=True)
    A(f's_mov_b32 s12, {FLG_WOF}')
    attn.signal(A, 12)
    A(f's_branch {top}')
    A(f'{ls}:')
    A(f's_sub_u32 s13, s13, {T_SSM0}')
    ssm.ssm_task(A, 13)
    A(f's_branch {top}')
    A(f'{lao}:')
    lo = A.lab('wout'); l2 = A.lab('wao2'); latt = A.lab('watt'); lr2 = A.lab('wr2'); lsm = A.lab('wsm'); lattseg = A.lab('wattseg')
    A(f'''s_sub_u32 s13, s13, {T_AO0}
    s_cmp_ge_u32 s13, {N_R1}
    s_cbranch_scc1 {lr2}
    s_cmp_lt_u32 s13, 16
    s_cbranch_scc0 {l2}
    s_mov_b32 s16, 0
    s_mov_b32 s17, s13
    s_branch {latt}
    {l2}:
    s_sub_u32 s13, s13, 16
    s_mul_hi_u32 s16, s13, {(2**32 + 23)//24}
    s_mul_i32 s17, s16, 24
    s_sub_u32 s17, s13, s17
    s_add_u32 s16, s16, 1
    s_cmp_lt_u32 s17, 16
    s_cbranch_scc1 {latt}
    s_sub_u32 s10, s17, 16              ; db
    s_sub_u32 s9, s16, 1
    s_branch {lo}
    {lr2}:
    s_sub_u32 s13, s13, {N_R1}
    s_cmp_lt_u32 s13, 8
    s_cbranch_scc0 {lr2}_b
    s_mov_b32 s10, s13
    s_mov_b32 s9, {NBIG - 1}
    s_branch {lo}
    {lr2}_b:
    s_sub_u32 s13, s13, 8
    s_mul_hi_u32 s9, s13, {(2**32 + 47)//48}
    s_mul_i32 s17, s9, 48
    s_sub_u32 s17, s13, s17             ; 0..47
    s_add_u32 s9, s9, {SMALL0}          ; seg
    s_cmp_lt_u32 s17, 8
    s_cbranch_scc1 {lattseg}
    s_sub_u32 s17, s17, 8               ; 0..39
    s_and_b32 s10, s17, 1               ; tt
    s_lshr_b32 s11, s17, 1              ; db32''')
    def wsm(A):
        attn.wait_flags(A, f'''s_lshl_b32 s16, s9, 5
        s_add_u32 s16, s16, {FLG_O}
        v_mov_b32 v4, s16
        v_mov_b32 v6, {FLG_WOF}
        v_cmp_eq_u32 vcc, 1, v1
        s_nop 1
        v_cndmask_b32 v4, v4, v6, vcc''', 1, '''v_mov_b32 v5, 8''', ra=4, rt=5, rv=7, sleep=2)
    attn.wait_flags(A, f'v_mov_b32 v2, {FLG_WOF}', 1, 'v_mov_b32 v3, 32')
    attn.outs_task(A, wsm)
    A(f's_branch {top}')
    A(f'{lo}:')
    attn.wait_flags(A, f'''s_lshl_b32 s16, s9, 6
    s_add_u32 s16, s16, {FLG_O}
    v_lshlrev_b32 v2, 5, v1
    v_add_u32 v2, s16, v2
    v_mov_b32 v4, {FLG_WOF}
    v_cmp_eq_u32 vcc, 2, v1
    s_nop 1
    v_cndmask_b32 v2, v2, v4, vcc''', 3, '''v_mov_b32 v3, 8
    v_mov_b32 v4, 32
    v_cndmask_b32 v3, v3, v4, vcc''')
    attn.outp_task(A)
    A(f's_branch {top}')
    A(f'{latt}:')
    A(f'''s_lshl_b32 s9, s16, 1
    s_lshr_b32 s18, s17, 3
    s_add_u32 s9, s9, s18               ; seg
    s_and_b32 s17, s17, 7               ; hg
    {lattseg}:
    s_lshl_b32 s10, s17, 2
    s_add_u32 s10, s10, s8              ; h
    s_lshl_b32 s44, s9, 5
    s_add_u32 s44, s44, {FLG_O}''')
    attn.wait_flags(A, f'''s_lshl_b32 s18, s17, 8
    s_lshl_b32 s19, s9, 2
    s_add_u32 s18, s18, s19
    s_add_u32 s19, s18, {FLG_Q}
    v_mov_b32 v2, s19
    s_add_u32 s19, s18, {FLG_KV}
    v_mov_b32 v4, s19
    v_cmp_eq_u32 vcc, 1, v1
    s_nop 1
    v_cndmask_b32 v2, v2, v4, vcc''', 2, '''v_mov_b32 v3, 2
    v_mov_b32 v4, 4
    v_cndmask_b32 v3, v3, v4, vcc''')
    attn.attn_consts(A)
    def wh(A):
        attn.wait_flags(A, f'''s_lshl_b32 s27, s9, 5
        s_add_u32 s27, s27, s10
        s_lshl_b32 s27, s27, 5
        s_add_u32 s27, s27, {FLG_H}
        v_lshlrev_b32 v6, 2, v1
        v_add_u32 v6, s27, v6''', 8, 'v_mov_b32 v7, 1', ra=6, rt=7, rv=8, sleep=4)
    attn.attn_task(A, sc1=True, mid=wh)
    A('s_waitcnt vmcnt(0)')
    A('s_barrier')
    attn.signal(A, 44)
    A(f's_branch {top}')

def build(cfg):
    hdr = open('concat_heads__ssm_conv_s4__memory_aug_recurrent_mem_tr__prompt.s.ref').read().split('\n')
    head = []
    for l in hdr:
        if l.startswith('; @launch'):
            break
        head.append(l)
    launches = [('prep_kernel', 32, 256, 0), (MAIN, 256, 256, 143360)]
    t = '\n'.join(head) + '\n'
    for n, g, b, l in launches:
        t += f'; @launch kernel={n} grid=({g},1,1) block=({b},1,1) lds={l}\n'
    t += '.amdgcn_target "amdgcn-amd-amdhsa--gfx950"\n'
    ccfg = dict(cfg.get('chain', {})); ccfg['workers'] = workers
    t += gen_prep({})
    t += chain.gen_chain(ccfg, name=MAIN)
    return t

if __name__ == '__main__':
    import json
    out = sys.argv[1] if len(sys.argv) > 1 else 'concat_heads__ssm_conv_s4__memory_aug_recurrent_mem_tr__prompt.s'
    ccfg = json.loads(sys.argv[2]) if len(sys.argv) > 2 else {'e1_sleep': 2, 'e2_sleep': 2}
    LOG = bool(ccfg.get('steplog'))
    t = build({'chain': ccfg})
    open(out, 'w').write(t)
    print('written', out, len(t), 'tasks', N_TASKS)
```
